```python
import torch

def _softmax(x, axis=-1):
    return torch.softmax(x, dim=axis)

def _gelu(x):
    return torch.nn.functional.gelu(x, approximate='tanh')

def _silu(x):
    return torch.nn.functional.silu(x)

def _sigmoid(x):
    return torch.sigmoid(x)

def _layernorm(x, axis=-1, eps=1e-05):
    m = x.mean(dim=axis, keepdim=True)
    v = x.var(dim=axis, keepdim=True, unbiased=False)
    return (x - m) / torch.sqrt(v + eps)

def _scatter_add(tgt, idx, src, axis=0):
    return tgt.clone().index_add_(axis, idx, src)

def _segment_sum(src, seg, n):
    out = torch.zeros((n,) + src.shape[1:], dtype=src.dtype)
    return out.index_add_(0, seg, src)

def _pad(x, pw):
    flat = tuple((v for pair in reversed(pw) for v in pair))
    return torch.nn.functional.pad(x, flat)
kernel_name = 'sequential_preLN__memory_aug_recurrent_mem_tr__dense_activation_mish__prompt'

def setup_inputs():

    _w = lambda a: (lambda t: t.to(torch.bfloat16) if t.is_floating_point() else t)(torch.as_tensor(a))

    def _A_setup():
        B, S, Dm = (1, 2048, 640)
        H, Dh = (32, 192)
        M, seg = (8, 32)
        seg = min(seg, S)
        S = S // seg * seg
        return {'x': _w((lambda *s: torch.randn(*s, dtype=torch.bfloat16) * 0.05)(B, S, Dm)), 'mem0': _w((lambda *s: torch.randn(*s, dtype=torch.bfloat16) * 0.2)(B, M, Dm)), 'Wq': _w((lambda *s: torch.randn(*s, dtype=torch.bfloat16) * 1.6)(Dm, H, Dh) * Dm ** (-0.5)), 'Wk': _w((lambda *s: torch.randn(*s, dtype=torch.bfloat16) * 1.6)(Dm, H, Dh) * Dm ** (-0.5)), 'Wv': _w((lambda *s: torch.randn(*s, dtype=torch.bfloat16) * 0.2)(Dm, H, Dh) * Dm ** (-0.5)), 'Wo': _w((lambda *s: torch.randn(*s, dtype=torch.bfloat16) * 0.2)(H, Dh, Dm) * (H * Dh) ** (-0.5)), 'seg_len': seg}
    _A_in = _A_setup()

    def _B_setup():
        B, S, D, F = (1, 2048, 640, 1536)
        return {'x': _w((lambda *s: torch.randn(*s, dtype=torch.bfloat16) * 0.05)(B, S, D)), 'w1': _w((lambda *s: torch.randn(*s, dtype=torch.bfloat16) * 0.8)(D, F) * D ** (-0.5)), 'b1': _w((lambda *s: torch.randn(*s, dtype=torch.bfloat16) * 0.2)(F)), 'w2': _w((lambda *s: torch.randn(*s, dtype=torch.bfloat16) * 0.1)(F, D) * F ** (-0.5))}
    _B_in = _B_setup()
    return {'A_x': _A_in['x'], 'A_mem0': _A_in['mem0'], 'A_Wq': _A_in['Wq'], 'A_Wk': _A_in['Wk'], 'A_Wv': _A_in['Wv'], 'A_Wo': _A_in['Wo'], 'A_seg_len': _A_in['seg_len'], 'B_x': _B_in['x'], 'B_w1': _B_in['w1'], 'B_b1': _B_in['b1'], 'B_w2': _B_in['w2']}

def reference(A_x, A_mem0, A_Wq, A_Wk, A_Wv, A_Wo, A_seg_len, B_x, B_w1, B_b1, B_w2):

    def _A_ref(x, mem0, Wq, Wk, Wv, Wo, seg_len):
        B, S, Dm = x.shape
        H, Dh = (Wq.shape[1], Wq.shape[2])
        M = mem0.shape[1]
        scale = Dh ** (-0.5)
        n_seg = S // seg_len
        L = M + seg_len
        idx = torch.arange(L)
        mask = (idx[:, None] < M) | (idx[:, None] >= idx[None, :])
        mem = mem0
        outs = []
        for s in range(n_seg):
            xs = x[:, s * seg_len:(s + 1) * seg_len, :].clone()
            h = torch.concatenate([mem, xs], axis=1)
            q = torch.einsum('btd,dhe->bhte', h, Wq)
            k = torch.einsum('btd,dhe->bhte', h, Wk)
            v = torch.einsum('btd,dhe->bhte', h, Wv)
            scores = torch.einsum('bhqe,bhke->bhqk', q, k) * scale
            scores = torch.where(mask[None, None], scores, -1000000000.0)
            p = _softmax(scores, axis=-1)
            o = torch.einsum('bhqk,bhke->bhqe', p, v)
            o = torch.einsum('bhte,hed->btd', o, Wo)
            mem = o[:, :M, :].clone()
            outs.append(o[:, M:, :])
        return torch.concatenate(outs, axis=1)

    def _B_ref(x, w1, b1, w2):
        h = torch.einsum('bsd,df->bsf', x, w1) + b1
        sp = torch.log1p(torch.exp(-torch.abs(h))) + torch.where(h > 0, h, torch.zeros_like(h))
        act = h * torch.tanh(sp)
        return torch.einsum('bsf,fd->bsd', act, w2)
    x = A_x
    h = x + _A_ref(_layernorm(x, axis=-1), A_mem0, A_Wq, A_Wk, A_Wv, A_Wo, A_seg_len)
    h2 = h + _B_ref(_layernorm(h, axis=-1), B_w1, B_b1, B_w2)
    return h2
```

```python
import re
_REG = re.compile(r'^(-|abs\()?([vas])(\d+)\)?$')
_RNG = re.compile(r'^(-)?([vas])\[(\d+):(\d+)\]$')
TRANS = ('v_exp_f32','v_log_f32','v_rcp_f32','v_rsq_f32','v_sqrt_f32','v_sin_f32','v_cos_f32','v_rcp_iflag_f32')

def regs(op):
    op = op.strip()
    if op.startswith('|') and op.endswith('|'): op = op[1:-1]
    if op.startswith('-|') and op.endswith('|'): op = op[2:-1]
    m = _REG.match(op)
    if m: return {(m.group(2), int(m.group(3)))}
    m = _RNG.match(op)
    if m: return {(m.group(2), i) for i in range(int(m.group(3)), int(m.group(4)) + 1)}
    if op == 'vcc': return {('s', 106), ('s', 107)}
    if op == 'vcc_lo': return {('s', 106)}
    if op == 'vcc_hi': return {('s', 107)}
    if op == 'exec': return {('s', 126), ('s', 127)}
    if op == 'exec_lo': return {('s', 126)}
    if op == 'exec_hi': return {('s', 127)}
    if op == 'm0': return {('s', 124)}
    return set()

def passes(mn):
    if '32x32' in mn: return 8
    if '16x16' in mn: return 4
    raise ValueError(mn)

class Ins:
    def __init__(s, text):
        s.text = text
        t = text.split(';')[0].strip()
        p = t.split(None, 1)
        s.mn = p[0]
        rest = p[1] if len(p) > 1 else ''
        rest = re.sub(r'(quad_perm|op_sel|op_sel_hi|neg_lo|neg_hi):\[([^\]]*)\]', lambda m: m.group(1) + ':' + m.group(2).replace(',', '.').replace(' ', ''), rest)
        ops = [o.strip() for o in rest.split(',')] if rest else []
        s.mods = ''
        if ops:
            q = ops[-1].split(None, 1)
            ops[-1] = q[0]
            s.mods = q[1] if len(q) > 1 else ''
        s.ops = ops
        mn = s.mn
        s.kind = 'other'; s.w = set(); s.r = set(); s.a = set(); s.b = set(); s.c = set(); s.data = set()
        R = lambda i: regs(ops[i]) if i < len(ops) else set()
        allr = lambda i: set().union(*[regs(o) for o in ops[i:]]) if ops[i:] else set()
        if mn.startswith('v_mfma') or mn.startswith('v_smfmac'):
            s.kind = 'mfma'; s.w = R(0); s.a = R(1); s.b = R(2)
            if mn.startswith('v_smfmac'): s.c = R(0); s.a = s.a | R(3)
            else: s.c = R(3)
            s.r = s.a | s.b | s.c; s.passes = passes(mn)
        elif mn.startswith('v_'):
            s.kind = 'valu'
            if 'permlane' in mn or mn.startswith('v_swap'):
                s.w = R(0) | R(1); s.r = R(0) | R(1)
            elif mn.startswith(('v_add_co', 'v_sub_co', 'v_addc_co', 'v_subb_co', 'v_div_scale', 'v_mad_u64')):
                s.w = R(0) | R(1); s.r = allr(2)
            elif mn == 'v_nop': pass
            else:
                s.w = R(0); s.r = allr(1)
                if mn.startswith(('v_fmac', 'v_pk_fmac', 'v_dot2c', 'v_writelane')) or 'dpp' in mn or 'row_' in s.mods or 'quad_perm' in s.mods: s.r |= R(0)
                if mn.startswith('v_cmpx'): s.w |= regs('exec')
                if mn.startswith('v_div_fmas'): s.r |= regs('vcc')
            s.dpp = ('dpp' in mn) or any(k in s.mods for k in ('row_', 'quad_perm', 'wave_'))
        elif mn.startswith('ds_'):
            s.kind = 'ds'
            if mn.startswith(('ds_read', 'ds_bpermute', 'ds_permute', 'ds_swizzle')) or '_rtn' in mn:
                s.w = R(0); s.r = allr(1)
            else: s.r = allr(0)
        elif mn.startswith(('buffer_', 'global_')):
            s.kind = 'vmem'
            lds = bool(re.search(r'\blds\b', s.mods)) or 'load_lds' in mn
            s.lds = lds
            if mn in ('buffer_inv', 'buffer_wbl2'): pass
            elif 'load' in mn and not lds: s.w = R(0); s.r = allr(1)
            elif 'atomic' in mn and 'sc0' in s.mods:
                s.w = R(0); s.r = allr(0)
            else:
                s.r = allr(0)
                if 'store' in mn and ('x3' in mn or 'x4' in mn):
                    s.data = R(0) if mn.startswith('buffer') else R(1)
        elif mn.startswith('s_'):
            s.kind = 'salu'
            if mn.startswith(('s_cmp', 's_bitcmp', 's_cbranch', 's_branch', 's_waitcnt', 's_nop', 's_barrier', 's_endpgm', 's_sleep', 's_setprio')):
                s.r = allr(0)
            else:
                s.w = R(0); s.r = allr(1)
                if 'saveexec' in mn: s.w |= regs('exec')
        s.states = 1
        if mn == 's_nop': s.states = int(ops[0], 0) + 1

def need(p, c):
    n = 0
    vw = {x for x in p.w if x[0] != 's'}; sw = {x for x in p.w if x[0] == 's'}
    if p.kind == 'valu':
        if c.kind == 'mfma' and vw & c.r: n = max(n, 2)
        if c.kind == 'valu':
            if 'permlane' in c.mn and vw & c.r: n = max(n, 2)
            if getattr(c, 'dpp', False) and vw & c.r: n = max(n, 2)
            if c.mn.startswith(('v_readlane', 'v_readfirstlane')) and vw & c.r: n = max(n, 1)
            if p.mn.startswith(TRANS) and not c.mn.startswith(TRANS) and vw & c.r: n = max(n, 1)
            if sw & c.r:
                n = max(n, 4 if c.mn.startswith(('v_readlane', 'v_writelane', 'v_div_fmas')) else 2)
            if sw & regs('exec'):
                if getattr(c, 'dpp', False): n = max(n, 5)
                if 'permlane' in c.mn or c.mn.startswith(('v_readlane', 'v_readfirstlane', 'v_writelane')): n = max(n, 4)
            if 'op_sel' in p.mods or 'sel:' in p.mods:
                if vw & (c.r | c.w): n = max(n, 1)
        if p.mn.startswith(TRANS) and c.kind in ('mfma',) and vw & c.r: n = max(n, 2)
        if c.kind == 'mfma' and sw & regs('exec'): n = max(n, 4)
        if c.kind == 'vmem' and sw & c.r: n = max(n, 5)
    if p.kind == 'salu':
        if (('s', 124) in sw) and c.kind == 'vmem' and getattr(c, 'lds', False): n = max(n, 1)
    if p.kind == 'vmem' and p.data:
        if p.data & c.w: n = max(n, 2 if c.kind in ('valu', 'mfma') else 1)
    if p.kind == 'mfma':
        k = {2: 0, 4: 1, 8: 2, 16: 3}[p.passes]
        if c.kind == 'mfma':
            if p.w & c.c:
                if not (p.w == c.c and p.passes == c.passes): n = max(n, [4, 6, 10, 18][k])
            if p.w & (c.a | c.b): n = max(n, [5, 8, 12, 20][k])
            if (p.w & c.w) and not (p.w & c.c): n = max(n, [4, 6, 10, 18][k])
        elif c.kind in ('valu', 'ds', 'vmem'):
            if p.w & (c.r | c.w): n = max(n, [5, 8, 12, 20][k])
            if c.kind == 'valu' and p.c & c.w: n = max(n, [1, 3, 7, 15][k])
    return n

class Asm:
    def __init__(s):
        s.items = []
        s.uid = 0
    def __call__(s, *lines):
        for x in lines:
            for y in x.split('\n'):
                y = y.strip()
                if y: s.items.append(('i', Ins(y)))
    def lab(s, name): s.items.append(('l', name))
    def raw(s, text): s.items.append(('r', text))
    def cm(s, text): s.items.append(('r', '    ; ' + text))
    def newlab(s, p='L'):
        s.uid += 1; return f'{p}_{s.uid}'
    def text(s):
        out = []; win = []
        labpos = {}
        seq = s.items
        for idx, (k, v) in enumerate(seq):
            if k == 'l': labpos[v] = idx
        def follow(idx, maxn=24):
            r = []; j = idx
            while j < len(seq) and len(r) < maxn:
                k, v = seq[j]
                if k == 'i':
                    r.append(v)
                    if v.mn in ('s_branch', 's_endpgm'): break
                j += 1
            return r
        def req(win, c, extra=0):
            d = extra; n = 0
            for p in reversed(win):
                n = max(n, need(p, c) - d)
                d += p.states
                if d >= 20: break
            return n
        nn = 0
        for idx, (k, v) in enumerate(seq):
            if k == 'l': out.append(v + ':'); continue
            if k == 'r':
                out.append(v)
                if v.startswith('.p2align') : win = []
                continue
            n = req(win, v)
            if v.mn.startswith(('s_cbranch', 's_branch')) and v.ops[0] in labpos:
                d = 1
                for c in follow(labpos[v.ops[0]]):
                    n = max(n, req(win, c, d)); d += c.states
                    if d >= 20: break
            while n > 0:
                m = min(n, 16); nop = Ins(f's_nop {m-1}'); out.append('    ' + nop.text + '  ; hz'); win.append(nop); n -= m; nn += 1
            out.append('    ' + v.text)
            win.append(v)
            if v.mn in ('s_branch', 's_endpgm'): win = []
            win = win[-24:]
        return '\n'.join(out) + '\n'

def vr(b, n=1, t='v'):
    return f'{t}{b}' if n == 1 else f'{t}[{b}:{b+n-1}]'
```

```python
from asm import *
from layout import *

def kstart(a, name):
    a.raw(f'.p2align 8\n.globl {name}\n.type {name},@function\n{name}:')

def kdesc(name, nv, acc, ns=102):
    return f'''.amdhsa_kernel {name}
  .amdhsa_next_free_vgpr {nv}
  .amdhsa_next_free_sgpr {ns}
  .amdhsa_accum_offset {acc}
  .amdhsa_group_segment_fixed_size 0
  .amdhsa_kernarg_size 112
  .amdhsa_user_sgpr_count 2
  .amdhsa_user_sgpr_kernarg_segment_ptr 1
  .amdhsa_system_sgpr_workgroup_id_x 1
.end_amdhsa_kernel
'''

def srd_ws(a, d, p):
    a(f"s_add_u32 s{d}, s{p}, 0x1fffff", f"s_addc_u32 s{d+1}, s{p+1}, 0",
      f"s_and_b32 s{d}, s{d}, 0xffe00000", f"s_and_b32 s{d+1}, s{d+1}, 0xffff",
      f"s_mov_b32 s{d+2}, {WS_RANGE}", f"s_mov_b32 s{d+3}, 0x20000")

def srd(a, d, p, nbytes):
    a(f"s_mov_b32 s{d}, s{p}", f"s_and_b32 s{d+1}, s{p+1}, 0xffff",
      f"s_mov_b32 s{d+2}, {nbytes}", f"s_mov_b32 s{d+3}, 0x20000")

class Cnt:
    def __init__(s, a, name, cap): s.a = a; s.name = name; s.cap = cap; s.q = []
    def issue(s, tag): s.q.append(tag)
    def wait(s, tag):
        idx = max(i for i, t in enumerate(s.q) if t == tag) if tag in s.q else -1
        if idx < 0: return
        n = len(s.q) - 1 - idx
        s.a(f"s_waitcnt {s.name}({min(n, s.cap)})")
        if n <= s.cap: s.q = s.q[idx + 1:]
        else: s.q = s.q[len(s.q) - s.cap:]
    def waitall(s):
        s.a(f"s_waitcnt {s.name}(0)"); s.q = []
    def reset(s): s.q = []

def xsum(a, op, v, t):
    a(f"v_mov_b32 v{t}, v{v}", f"v_permlane16_swap_b32 v{v}, v{t}", f"{op} v{v}, v{v}, v{t}")
    a(f"v_mov_b32 v{t}, v{v}", f"v_permlane32_swap_b32 v{v}, v{t}", f"{op} v{v}, v{v}, v{t}")

def rbf(a, v):
    a(f"v_cvt_pk_bf16_f32 v{v}, v{v}, v{v}", f"v_and_b32 v{v}, 0xffff0000, v{v}")
```

```python
from common import *
from k0 import ln_core
WS = "s[4:7]"

KORD = [2 * s + h for sgs in ((0, 2, 4, 6), (1, 3, 5, 7), (8, 9)) for h in range(2) for s in sgs]

def prefetch(a, L, lo, hi, pace):
    a("s_cmp_eq_u32 s16, 0", "s_cselect_b32 s30, s40, s42", "s_cselect_b32 s31, s41, s43", "s_cmp_ge_u32 s16, 2", "s_cselect_b32 s30, s44, s30", "s_cselect_b32 s31, s45, s31")
    srd(a, 72, 30, 640 * 12288); srd(a, 76, 46, 6144 * 1280)
    a("v_cmp_le_u32 vcc, 24, v1", "v_subrev_u32 v90, 24, v1", "v_cndmask_b32 v90, v1, v90, vcc", "s_mul_i32 s30, s60, 24", "v_add_u32 v90, s30, v90", "v_lshlrev_b32 v90, 7, v90")
    a("s_mov_b32 exec_hi, 0xffff")
    def touch(v, srdn):
        if pace is not None: a(f"s_waitcnt vmcnt({pace})")
        a(f"buffer_load_dword v95, v{v}, {srdn}, 0 offen")
    def pair(k0, k1):
        a(f"v_mov_b32 v91, {k0*393216}", f"v_mov_b32 v92, {k1*393216}", "v_cndmask_b32 v91, v91, v92, vcc", "v_add_u32 v91, v91, v90"); touch(91, "s[72:75]")
    a("s_cmp_ge_u32 s16, 2", f"s_cbranch_scc1 {L}_pf2")
    for r in range(lo, hi): pair(KORD[2 * r], KORD[2 * r + 1])
    a(f"s_branch {L}_pf9")
    a.lab(f"{L}_pf2")
    a("s_cmp_eq_u32 s16, 3", f"s_cbranch_scc1 {L}_pf3")
    for r in range(lo, min(hi, 5)): pair(KORD[4 * r], KORD[4 * r + 1])
    a(f"s_branch {L}_pf4")
    a.lab(f"{L}_pf3")
    for r in range(lo, min(hi, 5)): pair(KORD[4 * r + 2], KORD[4 * r + 3])
    a.lab(f"{L}_pf4")
    a("s_sub_u32 s30, s16, 2", "s_mul_i32 s30, s30, 6144", "s_mul_i32 s31, s60, 48", "s_add_u32 s30, s30, s31", "v_add_u32 v90, s30, v1", "s_mov_b32 s31, 52429")
    for r in range(max(lo, 5) - 5, hi - 5):
        a(f"v_add_u32 v91, {r*12288}, v90", "v_lshrrev_b32 v92, 6, v91", "v_mul_u32_u24 v92, s31, v92", "v_lshrrev_b32 v92, 18, v92")
        a("v_mul_u32_u24 v93, 320, v92", "v_sub_u32 v91, v91, v93", "v_lshlrev_b32 v91, 7, v91")
        a("v_and_b32 v93, 31, v92", "v_mul_u32_u24 v93, 245760, v93", "v_lshrrev_b32 v92, 5, v92", "v_mul_u32_u24 v92, 40960, v92", "v_add3_u32 v91, v91, v92, v93")
        touch(91, "s[76:79]")
    a.lab(f"{L}_pf9")
    a("s_mov_b32 exec_hi, -1")
for L_ in range(61440): assert (((L_ >> 6) * 52429) >> 18) == L_ // 320

def gen_init(a, nwt, OPT):
    a.lab("I_start")
    a(f"s_load_dwordx4 s[64:67], s[0:1], {A_X}", f"s_load_dwordx2 s[68:69], s[0:1], {A_W1}", f"s_load_dwordx2 s[70:71], s[0:1], {A_W2}")
    a("v_lshlrev_b32 v3, 4, v0")
    for i in range(4): a(f"v_mov_b32 v{16+i}, -1", f"v_mov_b32 v{80+i}, 0")
    a("s_waitcnt lgkmcnt(0)")
    srd(a, 8, 64, 2048 * 1280); srd(a, 12, 66, 8 * 1280)
    a("s_cmp_lg_u32 s16, 3", "s_cbranch_scc1 I_ln", f"s_cmp_ge_u32 s60, {NBLK}", "s_cbranch_scc1 I_ln")
    a("s_lshl_b32 s30, s60, 21", f"s_add_u32 s30, s30, {2*MB-16384+6144}", "s_add_u32 s31, s30, 8192")
    a("s_mov_b64 exec, 0xff", "s_mov_b32 s32, -1", "s_mov_b32 s33, -1", "s_mov_b32 s34, 0")
    a.lab("I_probe")
    for h in range(2):
        a("s_memtime s[72:73]", "s_waitcnt lgkmcnt(0)")
        a(f"buffer_store_dwordx4 v[16:19], v2, {WS}, s{30+h} offen sc1", "s_waitcnt vmcnt(0)")
        a("s_memtime s[74:75]", "s_waitcnt lgkmcnt(0)")
        a("s_sub_u32 s74, s74, s72", f"s_min_u32 s{32+h}, s{32+h}, s74")
    a("s_add_u32 s34, s34, 1", f"s_cmp_lt_u32 s34, {OPT.get('nprobe', 4)}", "s_cbranch_scc1 I_probe")
    a("s_cmp_lt_u32 s33, s32", "s_cselect_b32 s34, 1, 0", "v_mov_b32 v20, s34", "s_lshl_b32 s30, s60, 2", f"s_add_u32 s30, s30, {PAR}")
    a("s_mov_b64 exec, 1", f"buffer_store_dword v20, v2, {WS}, s30 offen sc1")
    if OPT.get('dbgt'):
        a("s_lshl_b32 s34, s34, s60", "v_mov_b32 v21, s34", "v_mov_b32 v22, 0", "global_atomic_or v22, v21, s[48:49] offset:40 sc1")
        a("s_cmp_ge_u32 s60, 3", "s_cbranch_scc1 I_nd", "s_mul_i32 s32, s32, 10000", "s_add_u32 s32, s32, s33", "v_mov_b32 v21, s32", "s_lshl_b32 s34, s60, 2", "v_mov_b32 v22, s34", "global_store_dword v22, v21, s[48:49] offset:44")
        a.lab("I_nd")
    a("s_mov_b64 exec, -1")
    a.lab("I_ln")
    X = 20; F = 40; T = 8
    a("v_and_b32 v4, 15, v1", "s_lshl_b32 s30, s60, 4", "v_add_u32 v5, s30, v4", "v_mul_u32_u24 v5, 1280, v5")
    a("v_and_b32 v6, 48, v1", "v_add_u32 v5, v5, v6", "s_mul_i32 s31, s16, 320")
    for i in range(5):
        a(f"buffer_load_dwordx4 v[{X+4*i}:{X+4*i+3}], v5, s[8:11], s31 offen offset:{64*i}")
    pf = OPT.get('pf', 1); PF0 = OPT.get('pf0', 2)
    if pf: prefetch(a, "I", 0, PF0, None)
    a("s_lshl_b32 s30, s16, 6", "v_lshlrev_b32 v7, 2, v4", "v_add_u32 v7, s30, v7")
    a(f"s_waitcnt vmcnt({PF0 if pf else 0})")
    ln_core(a, X, F, T, 7)
    a("s_mul_i32 s30, s60, 20480", "s_mul_i32 s31, s16, 5120", "s_add_u32 s30, s30, s31", f"s_add_u32 s30, s30, {XN}")
    for i in range(5):
        a(f"buffer_store_dwordx4 v[{X+4*i}:{X+4*i+3}], v2, {WS}, s30 offen sc1", "s_add_u32 s30, s30, 1024")
    a("s_mul_i32 s30, s60, 5120", f"s_add_u32 s30, s30, {ZM}", f"buffer_store_dwordx4 v[16:19], v3, {WS}, s30 offen sc1")
    a("s_add_u32 s30, s30, 4096", "s_lshl_b32 s31, s60, 10", "s_cmp_eq_u32 s16, 0", "s_cselect_b32 s30, s30, s31", "s_cmp_ge_u32 s16, 2", "s_cselect_b32 s30, 0x7ffffff0, s30")
    a(f"buffer_store_dwordx4 v[16:19], v2, {WS}, s30 offen sc1")
    a("v_lshlrev_b32 v14, 7, v0", f"s_mul_i32 s30, s60, {FL2_BYTES//128}", f"s_add_u32 s30, s30, {FL2}", "v_mov_b32 v15, 0x7ffffff0")
    a("v_cmp_gt_u32 vcc, 96, v0", "v_cndmask_b32 v14, v15, v14, vcc", f"buffer_store_dword v80, v14, {WS}, s30 offen sc1")
    a("s_lshl_b32 s62, s60, 7", f"s_add_u32 s62, s62, {WTF}", "v_cmp_eq_u32 vcc, 0, v0", "v_cndmask_b32 v14, v15, v0, vcc", f"buffer_store_dword v80, v14, {WS}, s62 offen sc1")
    a("s_lshl_b32 s30, s60, 8", f"s_add_u32 s30, s30, {HUQ}", "v_lshlrev_b32 v14, 7, v0", "v_cmp_gt_u32 vcc, 2, v0", "v_cndmask_b32 v14, v15, v14, vcc", f"buffer_store_dword v80, v14, {WS}, s30 offen sc1")
    per = (FLG_ZERO_HI - FLG_ZERO_LO) // 128
    assert per % 16 == 0 and per // 16 <= 64
    a(f"s_mul_i32 s30, s60, {per}", f"s_add_u32 s30, s30, {FLG_ZERO_LO}", f"v_cmp_gt_u32 vcc, {per//16}, v0", "v_cndmask_b32 v14, v15, v3, vcc")
    a(f"buffer_store_dwordx4 v[80:83], v14, {WS}, s30 offen sc1")
    a("s_sub_u32 s30, s60, 64", "s_cmp_ge_u32 s30, 10", "s_cbranch_scc1 I_nomem", "s_cmp_lg_u32 s16, 0", "s_cbranch_scc1 I_nomem")
    a("v_and_b32 v4, 12, v1", "v_lshrrev_b32 v4, 1, v4", "v_and_b32 v5, 1, v1", "v_add_u32 v4, v4, v5", "v_mul_u32_u24 v4, 1280, v4")
    a("v_and_b32 v5, 48, v1", "v_lshlrev_b32 v5, 1, v5", "v_add_u32 v4, v4, v5")
    a("v_and_b32 v5, 2, v1", "v_lshlrev_b32 v5, 1, v5", "v_add_u32 v4, v4, v5", "s_lshl_b32 s31, s30, 7")
    for i in range(4): a(f"buffer_load_dword v{84+i}, v4, s[12:15], s31 offen offset:{8*i}")
    a("s_add_u32 s30, s30, 20", "s_lshr_b32 s31, s30, 3", "s_lshl_b32 s31, s31, 14", "s_and_b32 s30, s30, 7", "s_lshl_b32 s30, s30, 10")
    a("s_add_u32 s30, s30, s31", f"s_add_u32 s30, s30, {M0B}", "s_waitcnt vmcnt(0)")
    for i in range(4): a(f"v_min_u32 v{84+i}, -2, v{84+i}")
    a(f"buffer_store_dwordx4 v[84:87], v2, {WS}, s30 offen sc1")
    a.lab("I_nomem")
    if pf: prefetch(a, "J", PF0, PF0 + 1, None)
    a(f"s_waitcnt vmcnt({1 if pf else 0})", "s_barrier")
    claim(a, "I_claimed")
    a.lab("I_claimed")
    if pf: prefetch(a, "K", PF0 + 1, 10, 0)
    a(f"s_cmp_ge_u32 s60, {nwt}", "s_cbranch_scc1 I_late")
    wait_init(a, 200000, 4)
    a("s_cmp_eq_u32 s16, 3", "s_cbranch_scc1 I_done")
    a.lab("I_wt")
    assert nwt == 64
    a("s_mul_i32 s61, s60, 15", "s_mul_i32 s30, s16, 5", "s_add_u32 s61, s61, s30")
    a("s_cmp_ge_u32 s60, 32", "s_cbranch_scc1 I_wt2")
    srd(a, 8, 68, 640 * 3072)
    a("s_movk_i32 s24, 2731", "s_movk_i32 s25, 24", "s_movk_i32 s26, 3072", "s_movk_i32 s27, 20480", f"s_mov_b32 s28, {W1F}")
    a("v_lshrrev_b32 v4, 4, v1", "v_lshlrev_b32 v4, 10, v4", "v_and_b32 v5, 12, v1", "v_lshlrev_b32 v5, 5, v5", "v_add_u32 v4, v4, v5", "s_movk_i32 s29, 512")
    a("s_branch I_wt3")
    a.lab("I_wt2")
    srd(a, 8, 70, 1536 * 1280)
    a("s_sub_u32 s61, s61, 480", "s_movk_i32 s24, 6554", "s_movk_i32 s25, 10", "s_movk_i32 s26, 1280", "s_mov_b32 s27, 49152", f"s_mov_b32 s28, {W2F}")
    a("v_lshrrev_b32 v4, 2, v1", "v_lshlrev_b32 v4, 7, v4", "s_movk_i32 s29, 2048")
    a.lab("I_wt3")
    a("v_and_b32 v5, 3, v1", "v_lshlrev_b32 v5, 3, v5", "s_mul_i32 s30, s16, 20480", "s_add_u32 s30, s30, 1024", "v_add3_u32 v4, v4, v5, s30", "v_add_u32 v5, s29, v4")
    a("v_lshrrev_b32 v6, 3, v1", "v_mul_lo_u32 v6, v6, s26", "v_and_b32 v7, 7, v1", "v_lshlrev_b32 v7, 4, v7", "v_add_u32 v6, v6, v7")
    a("s_lshl_b32 s33, s26, 3")
    for b in range(5):
        a(f"s_add_u32 s34, s61, {b}", "s_mul_i32 s35, s34, s24", "s_lshr_b32 s35, s35, 16", "s_mul_i32 s36, s35, s25", "s_sub_u32 s36, s34, s36")
        a("s_lshl_b32 s31, s26, 5", "s_mul_i32 s31, s31, s35", "s_lshl_b32 s32, s36, 7", "s_add_u32 s31, s31, s32")
        for i in range(4):
            a(f"s_add_u32 m0, s30, {4096*b+1024*i}", "buffer_load_dwordx4 v6, s[8:11], s31 offen lds", "s_add_u32 s31, s31, s33")
        a("s_lshl_b32 s36, s36, 2", "s_mul_i32 s36, s36, s27", "s_lshl_b32 s35, s35, 10", "s_add_u32 s36, s36, s35", f"s_add_u32 s{72+b}, s36, s28")
    a("s_waitcnt vmcnt(0)")
    for b in range(5):
        for t in range(4):
            r = 24 + 16 * b + 4 * t
            a(f"ds_read_b64_tr_b16 v[{r}:{r+1}], v4 offset:{4096*b+32*t}", f"ds_read_b64_tr_b16 v[{r+2}:{r+3}], v5 offset:{4096*b+32*t}")
        a("s_waitcnt lgkmcnt(0)")
        for t in range(4):
            r = 24 + 16 * b + 4 * t
            a(f"buffer_store_dwordx4 v[{r}:{r+3}], v2, {WS}, s{72+b} offen sc1", f"s_add_u32 s{72+b}, s{72+b}, s27")
    a.lab("I_done")
    a("s_waitcnt vmcnt(0)", "s_barrier")
    a("s_cmp_lg_u32 s16, 0", "s_cbranch_scc1 M_roles", "v_mov_b32 v4, 1")
    a("s_mov_b64 exec, 1", f"buffer_store_dword v4, v2, {WS}, s62 offen sc1", "s_mov_b64 exec, -1")
    a("s_branch M_roles")
    a.lab("I_late")
    for _ in range(OPT.get('late', 8)): a("s_sleep 32")
    a("s_branch M_roles")

def claim(a, skip):
    a("s_cmp_lg_u32 s16, 0", f"s_cbranch_scc1 {skip}")
    a("s_lshr_b32 s30, s3, 5", "s_lshl_b32 s30, s30, 3", "s_add_u32 s30, s30, s63", "s_lshl_b32 s31, 1, s3")
    a("v_mov_b32 v3, s30", "v_mov_b32 v4, s31", "v_mov_b32 v5, 0x100")
    a("s_mov_b64 exec, 1", "global_atomic_add_x2 v3, v[4:5], s[48:49] sc1", "s_mov_b64 exec, -1")

def claim_addr(a, t):
    a(f"v_and_b32 v{t}, 7, v1", f"v_lshlrev_b32 v{t}, 3, v{t}", f"v_add_u32 v{t}, s63, v{t}")
def claim_load(a, t):
    a(f"global_load_dwordx2 v[{t+2}:{t+3}], v{t}, s[48:49] sc1")
def claim_test(a, t):
    a(f"v_not_b32 v{t+2}, v{t+2}", f"v_xor_b32 v{t+1}, 0x2000, v{t+3}", f"v_or_b32 v{t+2}, v{t+2}, v{t+1}", f"v_cmp_ne_u32 vcc, 0, v{t+2}")
def par_load(a, t):
    a(f"v_lshlrev_b32 v{t}, 2, v1", f"s_mov_b32 s34, {PAR}", f"buffer_load_dword v{t+1}, v{t}, {WS}, s34 offen sc1")
def par_mask(a, t):
    a(f"v_and_b32 v{t+1}, 1, v{t+1}", f"v_cmp_eq_u32 s[20:21], 1, v{t+1}", "s_nop 3", "s_and_b32 s20, s20, 0xffffff")
    a("s_xor_b32 s21, s20, 0x555555", "s_bcnt1_i32_b32 s21, s21", "s_cmp_le_u32 s21, 4", "s_cselect_b32 s20, 0x555555, s20")
    a("s_cmp_ge_u32 s21, 20", "s_cselect_b32 s20, 0xaaaaaa, s20")

def wait_init(a, SPIN, t):
    l = a.newlab("WI"); g = a.newlab("WG")
    claim_addr(a, t); a("s_mov_b32 s35, 0")
    a.lab(l)
    claim_load(a, t); a("s_waitcnt vmcnt(0)")
    claim_test(a, t); a(f"s_cbranch_vccz {g}")
    a(f"v_lshrrev_b32 v{t+3}, 8, v{t+3}", "s_mov_b32 s30, 0")
    for k in range(8): a(f"v_readlane_b32 s31, v{t+3}, {k}", "s_add_u32 s30, s30, s31")
    a("s_cmp_ge_u32 s30, 256", "s_cbranch_scc1 M_again")
    a("s_sleep 20", "s_add_u32 s35, s35, 1", f"s_cmp_lt_u32 s35, {SPIN}", f"s_cbranch_scc1 {l}", "s_branch M_fail")
    a.lab(g)
    par_load(a, t); a("s_waitcnt vmcnt(0)"); par_mask(a, t)
```

```python
from common import *

def ln_core(a, X, F, T, vlds, nfr=5):
    n = nfr * 4
    for i in range(n):
        a(f"v_lshlrev_b32 v{F+2*i}, 16, v{X+i}", f"v_and_b32 v{F+2*i+1}, 0xffff0000, v{X+i}")
    def total(dst, off):
        xsum(a, "v_add_f32", dst, T + 1)
        if vlds is None:
            a(f"v_mul_f32 v{dst}, {hex(0x3acccccd)}, v{dst}"); return
        a(f"ds_write_b32 v{vlds}, v{dst} offset:{off}")
        a("s_waitcnt lgkmcnt(0)", "s_barrier")
        a(f"v_and_b32 v{T+1}, 63, v{vlds}")
        a(f"ds_read2_b32 v[{T+2}:{T+3}], v{T+1} offset0:{off//4} offset1:{off//4+16}")
        a(f"ds_read2_b32 v[{T+4}:{T+5}], v{T+1} offset0:{off//4+32} offset1:{off//4+48}")
        a("s_waitcnt lgkmcnt(0)")
        a(f"v_add_f32 v{T+2}, v{T+2}, v{T+3}", f"v_add_f32 v{T+4}, v{T+4}, v{T+5}", f"v_add_f32 v{dst}, v{T+2}, v{T+4}")
        a(f"v_mul_f32 v{dst}, {hex(0x3acccccd)}, v{dst}")
    a(f"v_add_f32 v{T}, v{F}, v{F+1}")
    a(f"v_add_f32 v{T+1}, v{F+2}, v{F+3}")
    for i in range(4, 2 * n, 2):
        a(f"v_add_f32 v{T}, v{T}, v{F+i}", f"v_add_f32 v{T+1}, v{T+1}, v{F+i+1}")
    a(f"v_add_f32 v{T}, v{T}, v{T+1}")
    total(T, 0)
    V = T + 6
    a(f"v_mov_b32 v{V}, 0", f"v_mov_b32 v{V+1}, 0")
    for i in range(0, 2 * n, 2):
        a(f"v_sub_f32 v{T+2}, v{F+i}, v{T}", f"v_sub_f32 v{T+3}, v{F+i+1}, v{T}")
        a(f"v_fmac_f32 v{V}, v{T+2}, v{T+2}", f"v_fmac_f32 v{V+1}, v{T+3}, v{T+3}")
    a(f"v_add_f32 v{V}, v{V}, v{V+1}")
    total(V, 256)
    rbf(a, T); rbf(a, V)
    a(f"v_add_f32 v{V}, {hex(0x3727c5ac)}, v{V}")
    rbf(a, V)
    a(f"v_sqrt_f32 v{V}, v{V}")
    rbf(a, V)
    a(f"v_rcp_f32 v{V}, v{V}")
    for i in range(n):
        a(f"v_sub_f32 v{F+2*i}, v{F+2*i}, v{T}", f"v_sub_f32 v{F+2*i+1}, v{F+2*i+1}, v{T}")
        a(f"v_cvt_pk_bf16_f32 v{X+i}, v{F+2*i}, v{F+2*i+1}")
        a(f"v_lshlrev_b32 v{F+2*i}, 16, v{X+i}", f"v_and_b32 v{F+2*i+1}, 0xffff0000, v{X+i}")
        a(f"v_mul_f32 v{F+2*i}, v{F+2*i}, v{V}", f"v_mul_f32 v{F+2*i+1}, v{F+2*i+1}, v{V}")
        a(f"v_cvt_pk_bf16_f32 v{X+i}, v{F+2*i}, v{F+2*i+1}")

def wt(a):
    a("s_cmp_ge_u32 s2, 240", "s_cbranch_scc1 K0_meas")
    a("s_lshl_b32 s17, s2, 2", "s_add_u32 s17, s17, s16")
    a("s_cmp_ge_u32 s2, 120", "s_cbranch_scc1 K0_wt2")
    srd(a, 44, 40, 640 * 3072)
    a("s_mul_i32 s18, s17, 2731", "s_lshr_b32 s18, s18, 16", "s_mul_i32 s19, s18, 24", "s_sub_u32 s19, s17, s19")
    a("s_movk_i32 s26, 3072", "s_movk_i32 s27, 20480", f"s_mov_b32 s28, {W1F}")
    a("v_lshrrev_b32 v4, 4, v1", "v_lshlrev_b32 v4, 10, v4", "v_and_b32 v5, 12, v1", "v_lshlrev_b32 v5, 5, v5", "v_add_u32 v4, v4, v5", "s_movk_i32 s29, 512")
    a("s_branch K0_wt3")
    a.lab("K0_wt2")
    srd(a, 44, 42, 1536 * 1280)
    a("s_sub_u32 s17, s17, 480", "s_mul_i32 s18, s17, 6554", "s_lshr_b32 s18, s18, 16", "s_mul_i32 s19, s18, 10", "s_sub_u32 s19, s17, s19")
    a("s_movk_i32 s26, 1280", "s_mov_b32 s27, 49152", f"s_mov_b32 s28, {W2F}")
    a("v_lshrrev_b32 v4, 2, v1", "v_lshlrev_b32 v4, 7, v4", "s_movk_i32 s29, 2048")
    a.lab("K0_wt3")
    a("v_and_b32 v5, 3, v1", "v_lshlrev_b32 v5, 3, v5", "s_lshl_b32 s30, s16, 12", "s_add_u32 s30, s30, 1024", "v_add3_u32 v4, v4, v5, s30", "v_add_u32 v5, s29, v4")
    a("v_lshrrev_b32 v6, 3, v1", "v_mul_lo_u32 v6, v6, s26", "v_and_b32 v7, 7, v1", "v_lshlrev_b32 v7, 4, v7", "v_add_u32 v6, v6, v7")
    a("s_lshl_b32 s31, s26, 5", "s_mul_i32 s31, s31, s18", "s_lshl_b32 s32, s19, 7", "s_add_u32 s31, s31, s32", "s_lshl_b32 s32, s26, 3")
    for i in range(4):
        a(f"s_add_u32 m0, s30, {1024*i}", "buffer_load_dwordx4 v6, s[44:47], s31 offen lds", "s_add_u32 s31, s31, s32")
    a("s_lshl_b32 s19, s19, 2", "s_mul_i32 s19, s19, s27", "s_lshl_b32 s18, s18, 10", "s_add_u32 s28, s28, s19", "s_add_u32 s28, s28, s18")
    a("s_waitcnt vmcnt(0)")
    for t in range(4):
        a(f"ds_read_b64_tr_b16 v[{24+4*t}:{25+4*t}], v4 offset:{32*t}", f"ds_read_b64_tr_b16 v[{26+4*t}:{27+4*t}], v5 offset:{32*t}")
    a("s_waitcnt lgkmcnt(0)")
    for t in range(4):
        a(f"buffer_store_dwordx4 v[{24+4*t}:{27+4*t}], v2, s[4:7], s28 offen", "s_add_u32 s28, s28, s27")
for t_ in range(480): assert (t_ * 2731) >> 16 == t_ // 24 and (t_ * 6554) >> 16 == t_ // 10

def gen_k0(a, name):
    kstart(a, name)
    a("s_cmp_ge_u32 s2, 256", "s_cbranch_scc1 K0_done")
    a(f"s_load_dwordx4 s[20:23], s[0:1], {A_X}", f"s_load_dwordx2 s[24:25], s[0:1], {A_WS}")
    a(f"s_load_dwordx2 s[40:41], s[0:1], {A_W1}", f"s_load_dwordx2 s[42:43], s[0:1], {A_W2}")
    a("v_and_b32 v1, 63, v0", "v_lshrrev_b32 v2, 6, v0", "v_readfirstlane_b32 s16, v2")
    a("v_lshlrev_b32 v2, 4, v1", "v_lshlrev_b32 v3, 4, v0")
    a("s_waitcnt lgkmcnt(0)")
    srd_ws(a, 4, 24); srd(a, 8, 20, 2048 * 1280); srd(a, 12, 22, 8 * 1280)
    X = 20; F = 40; T = 8
    a("s_cmp_ge_u32 s2, 128", "s_cbranch_scc1 K0_noln1")
    a("v_and_b32 v4, 15, v1", "s_lshl_b32 s17, s2, 4", "v_add_u32 v5, s17, v4", "v_mul_u32_u24 v5, 1280, v5")
    a("v_and_b32 v6, 48, v1", "v_add_u32 v5, v5, v6")
    a("s_mul_i32 s18, s16, 320")
    for i in range(5):
        a(f"buffer_load_dwordx4 v[{X+4*i}:{X+4*i+3}], v5, s[8:11], s18 offen offset:{64*i}")
    a.lab("K0_noln1")
    for i in range(4): a(f"v_mov_b32 v{16+i}, -1")
    a("s_lshl_b32 s17, s2, 14")
    for i in range(4):
        a(f"buffer_store_dwordx4 v[16:19], v3, s[4:7], s17 offen", "s_add_u32 s17, s17, 4096")
    a("s_lshl_b32 s17, s2, 13", f"s_add_u32 s17, s17, {ZM}")
    for i in range(2):
        a(f"buffer_store_dwordx4 v[16:19], v3, s[4:7], s17 offen", "s_add_u32 s17, s17, 4096")
    a("v_mov_b32 v15, 0", "v_lshlrev_b32 v14, 7, v0", f"s_mul_i32 s17, s2, {FL2_BYTES//256}", f"s_add_u32 s17, s17, {FL2}")
    a("v_cmp_gt_u32 vcc, 48, v0", "v_cndmask_b32 v14, v15, v14, vcc", "buffer_store_dword v15, v14, s[4:7], s17 offen")
    a("s_cmp_ge_u32 s2, 128", "s_cbranch_scc1 K0_other")
    a("s_lshl_b32 s17, s16, 6", "v_lshlrev_b32 v7, 2, v4", "v_add_u32 v7, s17, v7")
    a("s_waitcnt vmcnt(7)")
    ln_core(a, X, F, T, 7)
    a("s_mul_i32 s17, s2, 20480", "s_mul_i32 s18, s16, 5120", "s_add_u32 s17, s17, s18", f"s_add_u32 s17, s17, {XN}")
    for i in range(5):
        a(f"buffer_store_dwordx4 v[{X+4*i}:{X+4*i+3}], v2, s[4:7], s17 offen", "s_add_u32 s17, s17, 1024")
    a("s_branch K0_wt")
    a.lab("K0_other")
    nz = (FLG_ZERO_HI - FLG_ZERO_LO) // 4096
    a(f"s_cmp_ge_u32 s2, {128+nz}", "s_cbranch_scc1 K0_nozero")
    a("s_sub_u32 s17, s2, 128", "s_lshl_b32 s17, s17, 12", f"s_add_u32 s17, s17, {FLG_ZERO_LO}")
    for i in range(4): a(f"v_mov_b32 v{20+i}, 0")
    a("buffer_store_dwordx4 v[20:23], v3, s[4:7], s17 offen")
    a.lab("K0_nozero")
    a("s_sub_u32 s17, s2, 200", "s_cmp_ge_u32 s17, 3", "s_cbranch_scc1 K0_wt")
    a("s_lshl_b32 s17, s17, 2", "s_add_u32 s17, s17, s16", "s_cmp_ge_u32 s17, 10", "s_cbranch_scc1 K0_wt")
    a("v_and_b32 v4, 12, v1", "v_lshrrev_b32 v4, 1, v4", "v_and_b32 v5, 1, v1", "v_add_u32 v4, v4, v5", "v_mul_u32_u24 v4, 1280, v4")
    a("v_and_b32 v5, 48, v1", "v_lshlrev_b32 v5, 1, v5", "v_add_u32 v4, v4, v5")
    a("v_and_b32 v5, 2, v1", "v_lshlrev_b32 v5, 1, v5", "v_add_u32 v4, v4, v5")
    a("s_lshl_b32 s18, s17, 7")
    for i in range(4): a(f"buffer_load_dword v{24+i}, v4, s[12:15], s18 offen offset:{8*i}")
    a("s_add_u32 s17, s17, 20", "s_lshr_b32 s18, s17, 3", "s_lshl_b32 s18, s18, 14", "s_and_b32 s17, s17, 7", "s_lshl_b32 s17, s17, 10")
    a("s_add_u32 s17, s17, s18", f"s_add_u32 s17, s17, {M0B}")
    a("s_waitcnt vmcnt(0)")
    for i in range(4): a(f"v_min_u32 v{24+i}, -2, v{24+i}")
    a("buffer_store_dwordx4 v[24:27], v2, s[4:7], s17 offen")
    a.lab("K0_wt")
    wt(a)
    a.lab("K0_meas")
    a("s_cmp_lg_u32 s16, 3", "s_cbranch_scc1 K0_done")
    a("s_cmp_lt_u32 s2, 64", "s_cbranch_scc1 K0_done")
    a("s_getreg_b32 s19, hwreg(HW_REG_XCC_ID)", "s_and_b32 s19, s19, 15")
    a("s_cmp_ge_u32 s19, 4", "s_cbranch_scc1 K0_done")
    a("s_lshr_b32 s17, s2, 3", "s_sub_u32 s17, s17, 8")
    a("s_lshl_b32 s18, s17, 21", f"s_add_u32 s18, s18, {2*MB-16384+6144}", "s_lshl_b32 s19, s19, 7", "s_add_u32 s18, s18, s19")
    a("s_add_u32 s19, s18, 8192")
    a("s_mov_b64 exec, 0xff")
    a("s_mov_b32 s30, -1", "s_mov_b32 s31, -1")
    a("s_waitcnt vmcnt(0)")
    for it in range(5):
        for h in range(2):
            a("s_memtime s[26:27]", "s_waitcnt lgkmcnt(0)")
            a(f"buffer_store_dwordx4 v[16:19], v2, s[4:7], s{18+h} offen sc1")
            a("s_waitcnt vmcnt(0)")
            a("s_memtime s[28:29]", "s_waitcnt lgkmcnt(0)")
            a("s_sub_u32 s28, s28, s26", f"s_min_u32 s{30+h}, s{30+h}, s28")
    a("s_cmp_lt_u32 s31, s30", "s_cselect_b32 s28, 1, 0")
    a("v_mov_b32 v20, s28", "s_lshl_b32 s17, s17, 2", f"s_add_u32 s17, s17, {PAR}", "v_mov_b32 v21, 0")
    a("s_mov_b64 exec, 1")
    a("buffer_store_dword v20, v21, s[4:7], s17 offen")
    a.lab("K0_done")
    a("s_endpgm")
    return kdesc(name, 96, 96)
```

```python
MB = 1 << 20
EX = 0
ZM = 4 * MB
HUQ = ZM + 1920 * 1024
HUR = HUQ + 16384
FLG = 48 * MB
PAR = FLG
KXF = FLG + 0x1000
UF = FLG + 0x10000
M0B = FLG + 0x30000
FL2 = 226 * MB
KMF = FL2
PXF = FL2 + 0x40000
HFL = FL2 + 0x80000
AFL = FL2 + 0x100000
FL2_BYTES = 0x180000
WTF = FL2 + FL2_BYTES
FLG_ZERO_LO = FLG + 0x1000
FLG_ZERO_HI = FLG + 0x18000
XN = 49 * MB
KM = 52 * MB
QX = 65 * MB
KX = 91 * MB
U = 117 * MB
PX = 201 * MB
HB = 207 * MB
HN = 210 * MB
ACT = 213 * MB
W1F = 220 * MB
W2F = 222 * MB
STAMP = 230 * MB
WS_RANGE = 254 * MB
def choff(c): return (c // 8) * 16384 + (c % 8) * 1024
NBLK = 24
A_X, A_MEM0, A_WQ, A_WK, A_WV, A_WO, A_SEG, A_BX, A_W1, A_B1, A_W2, A_OUT, A_DBG, A_WS = [8 * i for i in range(14)]
for u in range(192): assert (u * 171) >> 10 == u // 6
for u in range(320): assert (u * 205) >> 11 == u // 10
E0 = 61
```

```python
from common import *
import init

SPIN = 200000
OPT = {}
WS = "s[4:7]"
LW = 0
LX = 81920

class Wmap:
    def __init__(s, blocks, ldsblocks):
        s.reg = {}; s.lds = {}
        n = 0
        for b in blocks:
            if b in ldsblocks: s.lds[b] = len(s.lds); continue
            s.reg[b] = ('a', 8 * n) if n < 32 else ('v', 112 + 8 * (n - 32))
            n += 1
        assert n == 50 and len(s.lds) == 10
    def r8(s, b):
        t, i = s.reg[b]; return f"{t}[{i}:{i+7}]"
    def r4(s, b, half):
        t, i = s.reg[b]; return f"{t}[{i+4*half}:{i+4*half+3}]"

def loader(a, pieces, wm, early=None):
    VA, VB, TA, TB, VP, PARK = 20, 23, 28, 29, 30, 32
    NA, NB = 6, 4
    nt = " nt" if OPT.get('ldnt') else ""
    kinds = {p[0] for p in pieces}
    CK0, CK1 = (9, 4) if 'B' in kinds else (13, 6)
    def mk(n, magic, shift, per, pitch, dst):
        for i in range(n):
            a(f"v_add_u32 v4, {64*i}, v1", f"v_mul_u32_u24 v5, {magic}, v4", f"v_lshrrev_b32 v5, {shift}, v5")
            a(f"v_mul_u32_u24 v6, {per}, v5", "v_sub_u32 v4, v4, v6", "v_lshlrev_b32 v4, 4, v4")
            a("v_and_b32 v6, 3, v5", "v_and_b32 v7, 12, v5", "v_lshlrev_b32 v7, 1, v7", "v_add_u32 v6, v6, v7")
            a("v_lshrrev_b32 v7, 4, v5", "v_lshlrev_b32 v7, 2, v7", "v_add_u32 v6, v6, v7")
            a(f"v_mul_u32_u24 v6, {pitch}, v6", f"v_add_u32 v{dst+i}, v6, v4")
    mk(3, 171, 10, 6, 12288, VA)
    a("s_mul_i32 s30, s16, 20480")
    vm = Cnt(a, "vmcnt", 63)
    slot = {}
    na = nb = 0
    for i, p in enumerate(pieces):
        if p[0] == 'A': slot[i] = (na % NA) * 3072; na += 1
        else: slot[i] = (nb % NB) * 5120; nb += 1
    def span(i): return (slot[i], slot[i] + (3072 if pieces[i][0] == 'A' else 5120))
    def issue(i):
        kind, srdn, soff, blks, half = pieces[i]
        soff("s31")
        n, base = (3, VA) if kind == 'A' else (5, VB)
        for j in range(n):
            a(f"s_add_u32 m0, s30, {slot[i]+1024*j}")
            a(f"buffer_load_dwordx4 v{base+j}, {srdn}, s31 offen{nt} lds")
            vm.issue(i)
    nxt = 0; live = []
    def fill():
        nonlocal nxt
        while nxt < len(pieces):
            lo, hi = span(nxt)
            if any(not (hi <= span(j)[0] or lo >= span(j)[1]) for j in live): break
            issue(nxt); live.append(nxt); nxt += 1
    fill()
    if 'B' in kinds: mk(5, 205, 11, 10, 1280, VB)
    a("v_lshrrev_b32 v4, 2, v1", "v_and_b32 v5, 3, v1", "v_lshlrev_b32 v5, 3, v5", "v_add_u32 v5, s30, v5")
    a(f"v_mul_u32_u24 v6, 96, v4", f"v_add_u32 v{TA}, v6, v5")
    a(f"v_mul_u32_u24 v6, 160, v4", f"v_add_u32 v{TB}, v6, v5")
    a("s_mul_i32 s33, s16, 20480", f"v_add_u32 v{VP}, s33, v2")
    for i, p in enumerate(pieces):
        kind, srdn, soff, blks, half = p
        vm.wait(i)
        if OPT.get('ldonly') and i in (0, len(pieces)//4, len(pieces)//2, 3*len(pieces)//4): a(f"s_memrealtime s[{80+2*(4*i//len(pieces))}:{81+2*(4*i//len(pieces))}]")
        tv, jst = (TA, 1536) if kind == 'A' else (TB, 2560)
        for t, b in enumerate(blks):
            ty, r = wm.reg[b] if b in wm.reg else ('v', PARK + 8 * wm.lds[b])
            r += 4 * half
            for jh in range(2):
                a(f"ds_read_b64_tr_b16 {ty}[{r+2*jh}:{r+2*jh+1}], v{tv} offset:{slot[i]+jh*jst+t*32}")
        if nxt < len(pieces): a("s_waitcnt lgkmcnt(0)")
        live.remove(i)
        fill()
        if i == len(pieces) - CK0: init.claim_addr(a, 8); init.claim_load(a, 8); vm.issue('c')
        if i == len(pieces) - CK1:
            vm.wait('c'); init.claim_test(a, 8); a("s_mov_b64 s[56:57], vcc")
            init.par_load(a, 8); vm.issue('p')
            if early:
                for _ in range(early()): vm.issue('e')
    a("s_waitcnt lgkmcnt(0)")
    for k in range(20):
        a(f"ds_write_b128 v{VP}, v[{PARK+4*k}:{PARK+4*k+3}] offset:{LW+k*1024}")
    ok = a.newlab("LD_ok"); dn = a.newlab("LD_dn")
    a("s_cmp_eq_u64 s[56:57], 0", f"s_cbranch_scc1 {ok}")
    init.wait_init(a, SPIN, 4)
    if early: early()
    a(f"s_branch {dn}")
    a.lab(ok)
    vm.wait('p'); init.par_mask(a, 8)
    a.lab(dn)
    a("s_waitcnt lgkmcnt(0)")

def dbgt(a, slot, t):
    if not OPT.get('dbgt'): return
    a("s_memrealtime s[100:101]", "s_waitcnt lgkmcnt(0)", "s_sub_u32 s100, s100, s98", f"v_mov_b32 v{t}, 0", f"v_mov_b32 v{t+1}, s100")
    a("s_mov_b64 exec, 1", f"global_atomic_umax v{t}, v{t+1}, s[48:49] offset:{4*slot} sc1", "s_mov_b64 exec, -1")

def fail(a):
    a("s_branch M_fail")

def setflag(a, soff, t, wait=0):
    a(f"v_mov_b32 v{t}, 1", f"s_waitcnt vmcnt({wait})")
    a("s_mov_b64 exec, 1", f"buffer_store_dword v{t}, v2, {WS}, {soff} offen sc1", "s_mov_b64 exec, -1")

def waitflags(a, soff, va, t):
    l = a.newlab("W"); g = a.newlab("G")
    a("s_mov_b32 s35, 0")
    a.lab(l)
    a(f"buffer_load_dword v{t}, v{va}, {WS}, {soff} offen sc1", "s_waitcnt vmcnt(0)")
    a(f"v_cmp_eq_u32 vcc, 0, v{t}", f"s_cbranch_vccz {g}")
    a(f"s_sleep {OPT.get('fsl', 4)}", "s_add_u32 s35, s35, 1", f"s_cmp_lt_u32 s35, {SPIN}", f"s_cbranch_scc1 {l}"); fail(a)
    a.lab(g)

def par_off(a, dst, blk):
    a(f"s_lshr_b32 s29, s20, {blk}", "s_and_b32 s29, s29, 1", "s_lshl_b32 s29, s29, 13", f"s_add_u32 {dst}, {dst}, s29")

def ex_base(a, dst, step):
    a(f"s_lshr_b32 s28, {step}, 5", f"s_lshl_b32 {dst}, {step}, 16"); par_off(a, dst, "s28")

def z_base(a, dst, step):
    a(f"s_mul_i32 s28, {step}, 171", "s_lshr_b32 s28, s28, 9")
    a(f"s_mul_i32 s27, s28, 3", f"s_sub_u32 s27, {step}, s27", f"s_mul_i32 s27, s27, {640*1024}")
    a(f"s_add_u32 s28, s28, 2", f"s_lshl_b32 {dst}, s28, 21", f"s_add_u32 {dst}, {dst}, s27"); par_off(a, dst, "s28")
for s_ in range(70): assert (s_ * 171) >> 9 == s_ // 3

def vmap(a, v, t):
    a(f"v_lshrrev_b32 v{t}, 13, v{v}", f"v_lshlrev_b32 v{t}, 13, v{t}", f"v_add_u32 v{v}, v{v}, v{t}")

def chk(a, rs, t):
    lvl = [f"v{r}" for r in rs]; ti = t
    while len(lvl) > 1:
        nx = []
        for i in range(0, len(lvl), 3):
            g = lvl[i:i+3]
            if len(g) == 1: nx.append(g[0]); continue
            d = f"v{ti}"; ti += 1
            a(f"v_max3_u32 {d}, {g[0]}, {g[1]}, {g[2]}" if len(g) == 3 else f"v_max_u32 {d}, {g[0]}, {g[1]}")
            nx.append(d)
        lvl = nx
    a(f"v_cmp_eq_u32 vcc, -1, {lvl[0]}")

class St:
    def __init__(s, a, on): s.a = a; s.on = on
    def __call__(s, i):
        if s.on and (OPT.get('sm', 255) >> i) & 1:
            if OPT.get('cyc'):
                s.a(f"s_memtime s[{80+2*i}:{81+2*i}]"); return
            if i >= 6: return
            s.a(f"s_memrealtime s[{80+2*i}:{81+2*i}]")
            if i == 0: s.a("s_memtime s[92:93]")
            if i == 1: s.a("s_memtime s[94:95]")
    def loaded(s):
        if not s.on: return
        a = s.a
        a("s_memrealtime s[100:101]", "s_waitcnt lgkmcnt(0)", "v_mov_b32 v60, s98", "v_mov_b32 v61, s100")
        a("s_lshl_b32 s96, s3, 5", "s_lshl_b32 s97, s16, 3", "s_add_u32 s96, s96, s97", f"s_add_u32 s96, s96, {STAMP+4*MB}")
        a("s_mov_b64 exec, 1", f"buffer_store_dwordx2 v[60:61], v2, {WS}, s96 offen", "s_mov_b64 exec, -1")
        if OPT.get('ldonly'):
            a("s_mov_b32 s19, 0"); s.dump(64); a("s_endpgm")
    def init(s):
        if s.on:
            s.a("s_memrealtime s[98:99]")
            for i in range(8): s.a(f"s_mov_b32 s{80+2*i}, 0")
    def dump(s, t, step="s19", second=False):
        if not s.on: return
        a = s.a
        a("s_waitcnt lgkmcnt(0)")
        for i in range(8): a(f"v_mov_b32 v{t+i}, s{80+2*i}")
        a("s_lshl_b32 s96, s3, 13", f"s_lshl_b32 s97, {step}, 7", "s_add_u32 s96, s96, s97", "s_lshl_b32 s97, s16, 5", "s_add_u32 s96, s96, s97", f"s_add_u32 s96, s96, {STAMP+(2*MB if second else 0)}")
        a("s_mov_b64 exec, 1")
        a(f"buffer_store_dwordx4 v[{t}:{t+3}], v2, {WS}, s96 offen", f"buffer_store_dwordx4 v[{t+4}:{t+7}], v2, {WS}, s96 offen offset:16")
        a("s_mov_b64 exec, -1")

IDX = 3; P0 = 4; P1 = 5; LRD = 9
WLD = 12
PR = 16; AF = 28; ACC = 60
LMEM = LX

def idx_setup(a, T):
    a(f"v_and_b32 v{T}, 2, v1", f"v_cmp_eq_u32 vcc, 0, v{T}", f"v_mov_b32 v{T}, 0x4444", f"v_mov_b32 v{T+1}, 0xeeee")
    a(f"v_cndmask_b32 v{IDX}, v{T+1}, v{T}, vcc")

def crit_setup(a, TMP):
    idx_setup(a, TMP)
    a("s_lshl_b32 s30, s16, 11", "s_lshl_b32 s31, s16, 9")
    a(f"v_add_u32 v{P0}, s30, v2", f"v_add_u32 v{P1}, s31, v2")
    a(f"v_add_u32 v{P0}, 20480, v{P0}", f"v_add_u32 v{P1}, {20480+8192}, v{P1}")
    vmap(a, P0, TMP + 1); vmap(a, P1, TMP + 1)
    a(f"s_add_u32 s52, s30, {LMEM}", f"s_add_u32 s53, s31, {LMEM+8192}")
    for p in range(1, 4):
        a(f"s_xor_b32 s31, s30, {p*2048}", f"s_add_u32 s31, s31, {LMEM}", f"v_add_u32 v{LRD+p-1}, s31, v2")
    a(f"v_add_u32 v13, {LMEM+8192}, v2")
    a("s_mul_i32 s30, s16, 20480", f"v_add_u32 v{WLD}, s30, v2")
    for i in range(8, 12): a(f"v_mov_b32 v{PR+i}, 0")
    a("s_lshl_b32 s30, s16, 3", "v_add_u32 v0, s30, v1", "s_lshl_b32 s30, s16, 1", "s_add_u32 s30, s30, 24", f"v_add_u32 v{TMP}, s30, v1")
    a("v_cmp_gt_u32 vcc, 8, v1", f"v_cndmask_b32 v0, v{TMP}, v0, vcc", "v_lshlrev_b32 v0, 7, v0")
    hu_base(a, "s70", HUR)

def crit_soff(a, colreg, sig, half):
    def f(dst):
        if sig < 8:
            a(f"s_lshl_b32 s32, s16, 1", f"s_xor_b32 s32, s32, {sig}", "s_lshl_b32 s32, s32, 1", f"s_add_u32 s32, s32, {half}")
            a(f"s_mul_i32 s32, s32, {32*12288}", f"s_add_u32 {dst}, s32, {colreg}")
        else:
            a(f"s_add_u32 {dst}, {colreg}, {(2*sig+half)*32*12288}")
    return f

class Sched:
    def __init__(s, a, lg): s.a = a; s.lg = lg; s.mm = []; s.at = {}
    def add(s, text, needs=()): s.mm.append((text, list(needs))); return len(s.mm) - 1
    def fill(s, n, text, tag=None, pre=()):
        s.at.setdefault(n, []).append((text, tag, pre))
    def emit(s, lo=0, hi=None):
        hi = len(s.mm) if hi is None else hi
        for n in range(lo, hi):
            t, needs = s.mm[n]
            for d in needs: s.lg.wait(d)
            s.a(t)
            if n + 1 < hi:
                for d in s.mm[n + 1][1]: s.lg.wait(d)
            for text, tag, pre in s.at.get(n, []):
                for d in pre: s.lg.wait(d)
                s.a(text)
                if tag is not None: s.lg.issue(tag)

def add2(r):
    if OPT.get('pk', 0): return [f"v_pk_add_f32 v[{r}:{r+1}], v[{r}:{r+1}], v[{r+2}:{r+3}]"]
    return [f"v_add_f32 v{r}, v{r}, v{r+2}", f"v_add_f32 v{r+1}, v{r+1}, v{r+3}"]

def areg(sig): return PR + 4 * sig if sig < 2 else AF + 4 * (sig - 2)

def a_read(c):
    r = AF + 4 * c
    return f"ds_read_b128 v[{r}:{r+3}], v{LRD+c//2} offset:{(c%2)*1024}" if c < 6 else f"ds_read_b128 v[{r}:{r+3}], v13 offset:{(c-6)*1024}"

def hu_base(a, dst, base):
    a(f"s_mov_b32 {dst}, {base}"); par_off(a, dst, "2")

def hu_wait(a, tag, va, soff, want, R, depth, mask):
    a("s_mov_b32 s35, 0", f"s_mov_b64 exec, {mask}")
    for k in range(depth - 1):
        a(f"buffer_load_dword v{R+k}, v{va}, {WS}, {soff} offen sc1", "s_nop 15")
    a.lab(f"{tag}_hu")
    for k in range(depth):
        a(f"buffer_load_dword v{R+(k+depth-1)%depth}, v{va}, {WS}, {soff} offen sc1")
        if OPT.get('hp', 0): a(f"s_nop {OPT['hp']}")
        a(f"s_waitcnt vmcnt({depth-1})")
        a(f"v_cmp_gt_u32 vcc, {want}, v{R+k}", f"s_cbranch_vccz {tag}_hud")
    a("s_add_u32 s35, s35, 1", f"s_cmp_lt_u32 s35, {SPIN}", f"s_cbranch_scc1 {tag}_hu"); fail(a)
    a.lab(f"{tag}_hud")
    a("s_mov_b32 s35, 0", "s_mov_b64 exec, -1")

def poll_mem(a, tag, TMP, st):
    if OPT.get('hur', 1) and tag == "QK":
        a("s_cmp_lg_u32 s35, 0", "s_cbranch_scc1 QK_poll")
        a("s_cmp_ge_u32 s16, 2", "s_cbranch_scc1 QK_hub")
        hu_wait(a, tag, 0, "s70", "s19", PR, OPT.get('hdq', 4), "0xfffff")
        a.lab("QK_hub")
        a("s_barrier")
        for _ in range(OPT.get('qz', 5)): a("s_nop 7")
    elif OPT.get('hur', 1):
        hu_wait(a, tag, 0, "s70", "s19", PR, OPT.get('hd', 4), "0x3ff")
        for _ in range(OPT.get('vz', 5)): a("s_nop 7")
    st(5)
    a.lab(f"{tag}_poll")
    a(f"buffer_load_dwordx4 v[{PR}:{PR+3}], v{P0}, {WS}, s24 offen sc1", f"buffer_load_dwordx4 v[{PR+4}:{PR+7}], v{P0}, {WS}, s24 offen offset:1024 sc1")
    a("s_mov_b32 exec_hi, 0", "s_mov_b32 m0, s53")
    a(f"buffer_load_dwordx4 v[{PR+8}:{PR+11}], v{P1}, {WS}, s24 offen sc1")
    a(f"buffer_load_dwordx4 v{P1}, {WS}, s24 offen sc1 lds")
    a("s_mov_b32 exec_hi, -1", "s_mov_b32 m0, s52", "s_add_u32 s35, s35, 1")
    a(f"buffer_load_dwordx4 v{P0}, {WS}, s24 offen sc1 lds", f"buffer_load_dwordx4 v{P0}, {WS}, s24 offen offset:1024 sc1 lds")
    a(f"s_cmp_ge_u32 s35, {SPIN}", "s_cbranch_scc1 M_fail")
    a("s_waitcnt vmcnt(3)")
    a(f"v_max3_u32 v{TMP}, v{PR+3}, v{PR+7}, v{PR+11}", f"v_cmp_eq_u32 vcc, -1, v{TMP}")
    a(f"s_cbranch_vccnz {tag}_poll")
    st(4)
    if st.on: a("s_mov_b32 s73, s35")

def full_chk(TMP):
    return [f"v_max3_u32 v{TMP+k}, v{PR+4*k}, v{PR+4*k+1}, v{PR+4*k+2}" for k in range(3)] + \
           [f"v_max3_u32 v{TMP}, v{TMP}, v{TMP+1}, v{TMP+2}", f"v_cmp_eq_u32 vcc, -1, v{TMP}"]

def role_qk(a, st):
    STG = 84; TMP = 100
    LKX = LMEM + 10240
    LQK = LKX + 24576
    blocks = [(m, t, s) for s in range(10) for m in range(2) for t in range(3)]
    ldsb = {(1 - (s % 2), 2, s) for s in range(10)}
    wm = Wmap(blocks, ldsb)
    a.lab("M_qk")
    srd(a, 8, 40, 640 * 12288); srd(a, 12, 42, 640 * 12288)
    a("s_mul_i32 s36, s17, 384", "s_mul_i32 s30, s16, 96", "s_add_u32 s36, s36, s30")
    pieces = []
    for sgs in ((0, 2, 4, 6), (1, 3, 5, 7), (8, 9)):
        for half in range(2):
            for m in range(2):
                for s in sgs:
                    pieces.append(('A', "s[8:11]" if m == 0 else "s[12:15]", crit_soff(a, "s36", s, half), [(m, t, s) for t in range(3)], half))
    loader(a, pieces, wm); dbgt(a, 1, 4); st.loaded()
    crit_setup(a, TMP)
    KW = 14; XR = 15; KA = 6; AX = 7; AM = 8; QW = 108; QR = 111
    a(f"v_lshrrev_b32 v{TMP+1}, 4, v1")
    a(f"v_and_b32 v{KW}, 0xff, v2", f"v_lshlrev_b32 v{TMP+2}, 2, v{TMP+1}", f"v_add_u32 v{KW}, v{KW}, v{TMP+2}")
    a("s_mul_i32 s30, s16, 768", f"s_add_u32 s30, s30, {LQK+3072}", f"v_add_u32 v{KW}, s30, v{KW}")
    a(f"v_lshrrev_b32 v{TMP}, 2, v1", f"v_lshlrev_b32 v{TMP}, 4, v{TMP}", f"v_and_b32 v{TMP+2}, 1, v1", f"v_lshlrev_b32 v{TMP+2}, 3, v{TMP+2}")
    a(f"v_add_u32 v{XR}, v{TMP}, v{TMP+2}", f"v_add_u32 v{XR}, {LQK+3072}, v{XR}")
    a(f"v_and_b32 v{TMP}, 12, v1", f"v_lshlrev_b32 v{TMP}, 5, v{TMP}", f"v_and_b32 v{TMP+2}, 1, v1", f"v_lshlrev_b32 v{TMP+2}, 5, v{TMP+2}", f"v_add_u32 v{TMP}, v{TMP}, v{TMP+2}")
    a(f"v_lshlrev_b32 v{TMP+2}, 3, v{TMP+1}", f"v_and_b32 v{TMP+3}, 2, v1", f"v_lshlrev_b32 v{TMP+3}, 1, v{TMP+3}", f"v_add3_u32 v{TMP}, v{TMP}, v{TMP+2}, v{TMP+3}")
    for t in range(3):
        a("s_mul_i32 s30, s16, 3", f"s_add_u32 s30, s30, {t}", "s_lshr_b32 s31, s30, 1", "s_lshl_b32 s31, s31, 9", "s_and_b32 s30, s30, 1", "s_lshl_b32 s30, s30, 6")
        a("s_add_u32 s30, s30, s31", f"s_add_u32 s30, s30, {LQK}", f"v_add_u32 v{QW+t}, s30, v{TMP}")
    a(f"v_lshlrev_b32 v{TMP}, 8, v{TMP+1}", f"v_and_b32 v{TMP+2}, 15, v1", f"v_lshlrev_b32 v{TMP+2}, 3, v{TMP+2}", f"v_add_u32 v{QR}, v{TMP}, v{TMP+2}", f"v_add_u32 v{QR}, {LQK}, v{QR}")
    a("s_lshr_b32 s30, s17, 3", "s_mul_i32 s30, s30, 5120", "s_and_b32 s31, s17, 7", "s_lshl_b32 s32, s31, 9", "s_add_u32 s32, s32, s30")
    a("s_lshl_b32 s31, s31, 7", "s_add_u32 s31, s31, s30", "s_add_u32 s31, s31, 4096")
    a(f"v_and_b32 v{TMP}, 8, v1", f"v_and_b32 v{TMP+2}, 48, v1", f"v_and_b32 v{TMP+3}, 7, v1", f"v_lshlrev_b32 v{TMP+3}, 1, v{TMP+3}", f"v_add_u32 v{TMP+2}, v{TMP+2}, v{TMP+3}")
    a("s_lshl_b32 s33, s16, 6", "s_add_u32 s33, s33, s31", f"v_add_u32 v{AM}, s33, v{TMP+2}")
    a("s_lshl_b32 s33, s16, 7", "s_add_u32 s33, s33, s32", f"v_lshlrev_b32 v{AX}, 5, v{TMP}", f"v_lshlrev_b32 v{TMP+2}, 1, v{TMP+2}", f"v_add3_u32 v{AX}, v{AX}, v{TMP+2}, s33")
    vmap(a, AX, TMP + 3); vmap(a, AM, TMP + 3)
    a("s_mul_i32 s33, s16, 20", "v_add_u32 v0, s33, v1", "v_lshlrev_b32 v0, 7, v0")
    a("s_cmp_lt_u32 s16, 2", "s_cbranch_scc1 QK_set1")
    a(f"v_add_u32 v0, s32, v2", "s_sub_u32 s31, s31, 512", f"v_add_u32 v{AM}, s31, v2", "v_cmp_gt_u32 vcc, 32, v1", f"v_cndmask_b32 v0, v{AM}, v0, vcc")
    vmap(a, 0, TMP + 3)
    a(f"v_and_b32 v{TMP}, 56, v1", f"v_and_b32 v{TMP+2}, 4, v1", f"v_lshrrev_b32 v{TMP+2}, 1, v{TMP+2}", f"v_add_u32 v{TMP}, v{TMP}, v{TMP+2}")
    a(f"v_and_b32 v{TMP+2}, 2, v1", f"v_lshlrev_b32 v{TMP+2}, 1, v{TMP+2}", "s_and_b32 s30, s16, 1", f"v_add3_u32 v{TMP}, v{TMP}, v{TMP+2}, s30", f"v_lshlrev_b32 v{TMP}, 4, v{TMP}")
    a(f"v_and_b32 v{TMP+2}, 1, v1", f"v_mul_u32_u24 v{TMP+2}, 6144, v{TMP+2}", f"v_add_u32 v{AX}, v{TMP}, v{TMP+2}")
    a(f"v_and_b32 v{AM}, 1, v1", f"v_lshlrev_b32 v{AM}, 2, v{AM}")
    a.lab("QK_set1")
    a("s_mov_b32 s72, 0x7ffffff0")
    hu_base(a, "s71", HUQ); a("s_lshl_b32 s30, s17, 7", "s_add_u32 s71, s71, s30", "s_cmp_eq_u32 s16, 2", "s_cselect_b32 s71, s71, 0x7ffffff0")
    a("s_mov_b32 s37, 0x3dd53b95")
    a("s_mov_b32 s54, 0xff00ff00", "s_mov_b32 s55, 0xff00ff00", "s_mov_b32 s56, 0x00550055", "s_mov_b32 s57, 0x00550055", "s_mov_b32 s58, 0x42700000")
    a("s_barrier")
    KF = 8
    def kx_fetch(tag, seg, first):
        a(f"s_lshl_b32 s30, {seg}, 5", "s_add_u32 s30, s30, s17", "s_lshl_b32 s31, s30, 4", f"s_add_u32 s31, s31, {KXF+8}")
        a(f"s_mul_i32 s30, s30, 12288", f"s_add_u32 s30, s30, {KX}")
        a(f"s_and_b32 s32, {seg}, 1", "s_mul_i32 s32, s32, 12288", "s_and_b32 s33, s16, 1", "s_mul_i32 s33, s33, 6144", "s_add_u32 s32, s32, s33", f"s_add_u32 s32, s32, {LKX}")
        a("s_mov_b32 s35, 0")
        if not first: a(f"v_cmp_eq_u32 vcc, 0, v{TMP+6}", f"s_cbranch_vccz {tag}_g")
        a.lab(f"{tag}_f")
        a(f"buffer_load_dword v{TMP+6}, v{KF}, {WS}, s31 offen sc1", "s_waitcnt vmcnt(0)")
        a(f"v_cmp_eq_u32 vcc, 0, v{TMP+6}", f"s_cbranch_vccz {tag}_g")
        a("s_sleep 2", "s_add_u32 s35, s35, 1", f"s_cmp_lt_u32 s35, {SPIN}", f"s_cbranch_scc1 {tag}_f"); fail(a)
        a.lab(f"{tag}_g")
        for f in range(6):
            a(f"s_add_u32 m0, s32, {1024*f}", f"buffer_load_dwordx4 v{AX}, {WS}, s30 offen sc1 lds", "s_add_u32 s30, s30, 1024")
        a(f"buffer_load_dword v{TMP+6}, v{KF}, {WS}, s31 offen offset:512 sc1")
    a("s_mov_b32 s19, 0", f"s_mov_b32 s24, {M0B}")
    a("s_cmp_lt_u32 s16, 2", "s_cbranch_scc1 QK_step")
    kx_fetch("QK_k0", "s19", True)
    lg = Cnt(a, "lgkmcnt", 15)
    a.lab("QK_step")
    ex_base(a, "s25", "s19")
    a("s_mov_b32 s35, 0")
    a("s_and_b32 s30, s19, 1", "s_mul_i32 s30, s30, 12288", f"s_add_u32 s30, s30, {LKX}", f"v_add_u32 v{KA}, s30, v2")
    for i in range(8, 12): a(f"v_mov_b32 v{PR+i}, 0")
    tiles = [(0, 0), (0, 1), (0, 2), (1, 0), (1, 1), (1, 2)]
    order = [(0, i) for i in (5, 0, 1, 2, 3, 4)] + [(1, i) for i in (2, 0, 1, 3, 4, 5)] + [(sg, i) for sg in range(2, 10) for i in range(3)] + \
            [(sg, i) for sg in range(2, 8) for i in range(3, 6)] + [(8, 5), (9, 5), (8, 3), (9, 3), (8, 4), (9, 4)]
    lb = [tiles[i] + (sg,) for sg, i in order if tiles[i] + (sg,) in wm.lds]
    def wld(k):
        r = STG + 8 * (k % 2)
        return [(f"ds_read_b128 v[{r+4*h}:{r+4*h+3}], v{WLD} offset:{LW+wm.lds[lb[k]]*2048+h*1024}", ('w', k)) for h in range(2)]
    def cvw(i):
        r = ACC + 4 * i
        return [f"v_add_f32 v{r}, v{r}, v{r+2}", f"v_add_f32 v{r+1}, v{r+1}, v{r+3}", f"v_cvt_pk_bf16_f32 v{TMP+3+i%3}, v{r}, v{r+1}",
                f"ds_write_b32 v{QW+i}, v{TMP+3+i}" if i < 3 else f"ds_write_b32 v{KW}, v{TMP+i} offset:{(i%3)*256}"]
    HUS = ["s_mov_b64 exec, 1", f"buffer_store_dword v{TMP+7}, v2, {WS}, s71 offen sc1", "s_mov_b64 exec, -1"]
    a("s_add_u32 s30, s19, 1", f"v_mov_b32 v{TMP+7}, s30")
    T = ACC
    KB = [AF, AF + 8, STG, AF + 16, STG + 8, AF + 24]
    XK = [AF, AF + 8, STG]
    def rdx(r, f):
        return [(f"ds_read_b64_tr_b16 v[{r+2*jh}:{r+2*jh+1}], v{XR} offset:{f*512+jh*256}", ('x', f // 2)) for jh in range(2)]
    def rdq(k):
        return [(f"ds_read_b64_tr_b16 v[{PR+4*k+2*jh}:{PR+4*k+2*jh+1}], v{QR} offset:{k*1024+jh*128}", ('q', k)) for jh in range(2)]
    def rdk(n):
        return [(f"ds_read_b128 v[{KB[n]+4*h}:{KB[n]+4*h+3}], v{KA} offset:{(n%2)*6144+(2*(n//2)+h)*1024}", ('k', n)) for h in range(2)]
    def build(w0):
        sc = Sched(a, lg)
        busy = set()
        def put(n, text, tag=None, pre=()):
            while n in busy: n += 1
            busy.add(n); sc.at.setdefault(n, []).insert(0, (text, tag, pre)); return n
        for n, (sg, i) in enumerate(order):
            b = tiles[i] + (sg,); needs = []
            if sg >= 2: needs.append(('a', sg))
            if b in wm.reg: w = wm.r8(b)
            else:
                k = lb.index(b); needs.append(('w', k)); w = f"v[{STG+8*(k%2)}:{STG+8*(k%2)+7}]"
            sc.add(f"v_smfmac_f32_16x16x64_bf16 v[{ACC+4*i}:{ACC+4*i+3}], v[{areg(sg)}:{areg(sg)+3}], {w}, v{IDX}", needs)
        for k, x in enumerate(full_chk(TMP)): sc.fill(k, x)
        B1 = OPT.get('qb1', 5)
        sc.fill(B1, "s_cbranch_vccnz QK_pre"); sc.fill(B1, "s_waitcnt vmcnt(0)"); sc.fill(B1, "s_barrier"); busy.add(B1)
        for c in range(8): put(B1 + 1 + c, a_read(c), ('a', c + 2))
        for k in range(2, 10):
            n = next(n for n, (sg, i) in enumerate(order) if tiles[i] + (sg,) == lb[k - 2])
            for text, tag in wld(k): put(n, text, tag)
        n = 38
        for i in range(3):
            for x in cvw(i)[:3]: sc.fill(n, x); n += 1
            put(n, cvw(i)[3], 'qw')
        for x in ("s_mov_b64 exec, 1", f"buffer_store_dword v{TMP+7}, v2, {WS}, s72 offen sc1", "s_mov_b64 exec, -1"): sc.fill(21, x)
        sc.fill(32, "s_cmp_lt_u32 s16, 2")
        B2 = 50
        sc.fill(B2, "s_barrier", None, ['qw']); busy.add(B2)
        sc.fill(59, cvw(5)[0])
        hq = OPT.get('hq', 50)
        while hq in busy: hq += 1
        if (not w0 or hq < 42) and hq < 59:
            for x in HUS: sc.fill(hq, x)
        if w0:
            for x in rdk(0): put(42, *x)
            for x in rdk(1): put(48, *x)
            for x in rdq(0): put(51, *x)
            for x in rdk(2): put(51, *x)
            for x in rdq(1): put(51, *x)
            for x in rdk(3): put(54, *x)
            for h in range(6): sc.fill(48 + h + (h >= 2), f"v_mov_b64 v[{T+2*h}:{T+2*h+1}], 0")
        return sc
    a.lab("QK_pre")
    for i in range(12): a(f"v_mov_b64 v[{ACC+2*i}:{ACC+2*i+1}], 0")
    for k in range(2):
        for text, tag in wld(k): a(text)
    lg.waitall()
    if OPT.get('qdel'):
        a("s_cmp_ge_u32 s16, 2", "s_cbranch_scc1 QK_poll")
        for _ in range(OPT['qdel']): a("s_sleep 1")
    poll_mem(a, "QK", TMP, st)
    sc0, sc1 = build(False), build(True)
    SPLIT = 42
    sc0.emit(0, SPLIT)
    save = list(lg.q)
    a("s_cbranch_scc1 QK_w0")
    sc0.emit(SPLIT)
    st(0)
    for x in cvw(5)[1:] + cvw(3) + cvw(4): a(x)
    a("s_waitcnt lgkmcnt(0)", "s_barrier"); lg.reset()
    if OPT.get('hq', 50) >= 59:
        for _ in range(OPT['hq'] - 60): a("s_nop 3")
        a(*HUS)
    a("s_cmp_eq_u32 s16, 2", "s_cbranch_scc1 QK_w2")
    for f in range(6):
        for text, tag in rdx(AF + 4 * f, f): a(text)
    a("s_lshl_b32 s30, s19, 5", "s_add_u32 s30, s30, s17", "s_lshl_b32 s31, s30, 7", f"s_add_u32 s72, s31, {KMF}", "s_mul_i32 s30, s30, 6144", f"s_add_u32 s26, s30, {KM}")
    lg.waitall()
    a("s_cmp_eq_u32 s19, 63", "s_cbranch_scc1 QK_km")
    a("s_barrier")
    a.lab("QK_km")
    for f in range(6):
        a(f"buffer_store_dwordx4 v[{AF+4*f}:{AF+4*f+3}], v2, {WS}, s26 offen sc1", "s_add_u32 s26, s26, 1024")
    a("s_cmp_lt_u32 s19, 63", "s_cbranch_scc1 QK_w23")
    setflag(a, "s72", TMP)
    a("s_endpgm")
    a.lab("QK_w2")
    a("s_cmp_eq_u32 s19, 63", "s_cbranch_scc1 M_done")
    a("s_add_u32 s34, s19, 2", "s_min_u32 s34, s34, 63")
    ex_base(a, "s26", "s34")
    for i in range(4): a(f"v_mov_b32 v{TMP+i}, -1")
    a("s_barrier")
    a("s_mov_b32 exec_hi, 0xff", f"buffer_store_dwordx4 v[{TMP}:{TMP+3}], v0, {WS}, s26 offen sc1", "s_mov_b32 exec_hi, -1")
    a.lab("QK_w23")
    a("s_add_u32 s34, s19, 1")
    kx_fetch("QK_kn", "s34", False)
    a("s_branch QK_next")
    a.lab("QK_w0")
    lg.q = save
    sc1.emit(SPLIT)
    st(0)
    sc = Sched(a, lg)
    for n in range(6):
        k, kt = n // 2, n % 2
        sc.add(f"v_smfmac_f32_16x16x64_bf16 v[{T+4*kt}:{T+4*kt+3}], v[{PR+4*k}:{PR+4*k+3}], v[{KB[n]}:{KB[n]+7}], v{IDX}", [('q', k), ('k', n)])
    c5, c3, c4 = cvw(5), cvw(3), cvw(4)
    a(c5[1], c5[2])
    sc.fill(0, c5[3], 'kw'); sc.fill(0, c3[0]); sc.fill(0, c3[1]); sc.fill(0, c3[2])
    sc.fill(1, c3[3], 'kw'); sc.fill(1, c4[0]); sc.fill(1, c4[1]); sc.fill(1, c4[2])
    sc.fill(2, c4[3], 'kw'); sc.fill(2, *rdq(2)[0]); sc.fill(2, *rdq(2)[1]); sc.fill(2, *rdk(4)[0])
    sc.fill(3, *rdk(4)[1]); sc.fill(3, *rdk(5)[0]); sc.fill(3, *rdk(5)[1]); sc.fill(3, "s_cmp_eq_u32 s19, 63")
    sc.emit(0, 4)
    lg.wait('kw'); a("s_barrier", "s_cbranch_scc1 M_done", "s_cmp_eq_u32 s16, 1")
    xr = [x for f in range(6) for x in rdx(XK[f // 2] + 4 * (f % 2), f)]
    def rx(n):
        for _ in range(n):
            x = xr.pop(0); a(x[0]); lg.issue(x[1])
    rx(4); sc.emit(4, 5); rx(1); sc.emit(5, 6); rx(3)
    a("s_cbranch_scc1 QK_b1")
    st(2)
    full = "row_mask:0xf bank_mask:0xf"
    E = TMP; L = ACC + 12; O = ACC + 16
    keep = (list(lg.q), list(xr))
    for b in range(2):
        if b: a.lab("QK_b1")
        lg.q, xr = list(keep[0]), list(keep[1])
        UU = [T + b, T + 4 + b, T + 8 + b]
        def t2(k):
            lg.wait(('x', k))
            a(f"v_smfmac_f32_16x16x64_bf16 v[{T+8}:{T+11}], v[{PR+4*k}:{PR+4*k+3}], v[{XK[k]}:{XK[k]+7}], v{IDX}")
        ror = lambda op, r, sh: f"{op}_dpp v{r}, v{r}, v{r} row_ror:{sh} {full}"
        t2(0); rx(2)
        a(f"v_add_f32 v{UU[0]}, v{UU[0]}, v{UU[0]+2}")
        rx(2)
        a(f"v_add_f32 v{UU[1]}, v{UU[1]}, v{UU[1]+2}")
        t2(1)
        a(f"v_mul_f32 v{UU[0]}, s37, v{UU[0]}", f"v_mul_f32 v{UU[1]}, s37, v{UU[1]}")
        t2(2)
        a(f"v_exp_f32 v{E}, v{UU[0]}", f"v_exp_f32 v{E+1}, v{UU[1]}", f"v_add_f32 v{L}, v{E}, v{E+1}")
        a(ror("v_add_f32", L, 8))
        st(3)
        a(f"v_add_f32 v{UU[2]}, v{UU[2]}, v{UU[2]+2}", f"v_mul_f32 v{UU[2]}, s37, v{UU[2]}", f"v_exp_f32 v{E+2}, v{UU[2]}")
        a(f"v_max3_f32 v{L+1}, |v{UU[0]}|, |v{UU[1]}|, |v{UU[2]}|", f"v_add_f32 v{L}, v{L}, v{E+2}", f"v_cmp_nge_f32 vcc, s58, v{L+1}")
        a(f"s_cbranch_vccnz QK_truemax{b}")
        a.lab(f"QK_sum{b}")
        for sh in (4, 2, 1): a(ror("v_add_f32", L, sh))
        a(f"v_rcp_f32 v{L}, v{L}")
        a(f"v_mul_f32 v{E+2}, v{E+2}, v{L}", f"v_mul_f32 v{E}, v{E}, v{L}", f"v_mul_f32 v{E+1}, v{E+1}, v{L}")
        a(f"v_mov_b32_dpp v{L+2}, v{E+2} quad_perm:[1,0,3,2] {full}", f"v_cvt_pk_bf16_f32 v{O}, v{E}, v{E+1}")
        a(f"buffer_store_dword v{O}, v{AX}, {WS}, s25 offen sc1")
        a(f"v_cvt_pk_bf16_f32 v{O+1}, v{E+2}, v{L+2}", "s_mov_b64 exec, s[56:57]")
        a(f"buffer_store_dword v{O+1}, v{AM}, {WS}, s25 offen sc1")
        a("s_mov_b64 exec, -1", "s_barrier")
        st(1)
        if b == 0: a("s_branch QK_next")
    a.lab("QK_next")
    if st.on and not OPT.get('cyc'): a("s_waitcnt lgkmcnt(0)", "s_mov_b32 s86, s73")
    st.dump(STG)
    a("s_add_u32 s19, s19, 1")
    ex_base(a, "s24", "s19")
    a("s_branch QK_step")
    for b in range(2):
        UU = [T + b, T + 4 + b, T + 8 + b]
        a.lab(f"QK_truemax{b}")
        a(f"v_max3_f32 v{L+1}, v{UU[0]}, v{UU[1]}, v{UU[2]}")
        for sh in (8, 4, 2, 1): a(ror("v_max_f32", L + 1, sh))
        for r in range(3): a(f"v_sub_f32 v{E+r}, v{UU[r]}, v{L+1}")
        for r in range(3): a(f"v_exp_f32 v{E+r}, v{E+r}")
        a(f"v_add_f32 v{L}, v{E}, v{E+1}", ror("v_add_f32", L, 8), f"v_add_f32 v{L}, v{L}, v{E+2}", "s_nop 1", f"s_branch QK_sum{b}")

def vo_pieces(a, crit):
    pieces = []
    for s, half in [(s, h) for sgs in ((0, 2, 4, 6), (1, 3, 5, 7), (8, 9)) for h in range(2) for s in sgs]:
        if True:
            so = crit_soff(a, "s36", s, half) if crit else (lambda dst, k=2*s+half: a(f"s_add_u32 {dst}, s36, {k*32*12288}"))
            pieces.append(('A', "s[8:11]", so, [(0, t, s) for t in range(3)], half))
    for kf in range(6):
        for p in range(2):
            so = lambda dst, o=kf*32*1280+p*160: a(f"s_add_u32 {dst}, s37, {o}")
            pieces.append(('B', "s[12:15]", so, [(1, 5 * p + t, kf // 2) for t in range(5)], kf % 2))
    return pieces

def vo_wmap(ldsb=None):
    blocks = [(0, t, s) for s in range(10) for t in range(3)] + [(1, t, k) for t in range(10) for k in range(3)]
    return Wmap(blocks, ldsb or {(1, t, 2) for t in range(10)})

def vo_srds(a):
    srd(a, 8, 44, 640 * 12288); srd(a, 12, 46, 6144 * 1280)
    a("s_mul_i32 s36, s17, 384", "s_mul_i32 s30, s16, 96", "s_add_u32 s36, s36, s30")
    a(f"s_mul_i32 s37, s17, {192*1280}", "s_mul_i32 s30, s16, 320", "s_add_u32 s37, s37, s30")

def role_vo(a, st):
    STG = 80; TMP = 104
    LV = LMEM + 10240
    tord = [8, 9, 0, 1, 2, 3, 4, 5, 6, 7]
    lb = [(0, 2, 0), (0, 2, 1), (0, 2, 3), (0, 2, 6), (0, 2, 8), (1, 8, 2), (1, 9, 2), (1, 1, 2), (1, 4, 2), (1, 6, 2)]
    wm = vo_wmap(set(lb))
    a.lab("M_vo")
    vo_srds(a)
    loader(a, vo_pieces(a, True), wm); st.loaded()
    crit_setup(a, TMP)
    VW = 14; VR = 15; ZA = 6
    a(f"v_and_b32 v{TMP}, 12, v1", f"v_lshlrev_b32 v{TMP}, 4, v{TMP}", f"v_and_b32 v{TMP+1}, 1, v1", f"v_lshlrev_b32 v{TMP+1}, 5, v{TMP+1}", f"v_add_u32 v{TMP}, v{TMP}, v{TMP+1}")
    a(f"v_and_b32 v{TMP+1}, 48, v1", f"v_lshrrev_b32 v{TMP+1}, 1, v{TMP+1}", f"v_and_b32 v{TMP+2}, 2, v1", f"v_lshlrev_b32 v{TMP+2}, 1, v{TMP+2}")
    a(f"v_add3_u32 v{VW}, v{TMP}, v{TMP+1}, v{TMP+2}", "s_mul_i32 s30, s16, 768", f"s_add_u32 s30, s30, {LV}", f"v_add_u32 v{VW}, s30, v{VW}")
    a(f"v_and_b32 v{TMP}, 48, v1", f"v_lshlrev_b32 v{TMP}, 4, v{TMP}", f"v_and_b32 v{TMP+1}, 15, v1", f"v_lshlrev_b32 v{TMP+1}, 3, v{TMP+1}")
    a(f"v_add_u32 v{VR}, v{TMP}, v{TMP+1}", f"v_add_u32 v{VR}, {LV}, v{VR}")
    a(f"v_lshlrev_b32 v{ZA}, 2, v1")
    a(f"s_mul_i32 s38, s16, {10*16384}", "s_lshl_b32 s30, s17, 8", "s_add_u32 s38, s38, s30")
    a("s_barrier")
    a("s_mov_b32 s19, 0", f"s_mov_b32 s24, {M0B}")
    lg = Cnt(a, "lgkmcnt", 15)
    a.lab("VO_step")
    z_base(a, "s25", "s19"); a("s_add_u32 s25, s25, s38")
    for t in range(10): a(f"s_add_u32 s{60+t}, s25, {16384*t}")
    a("s_mov_b32 s35, 0")
    for i in range(8, 12): a(f"v_mov_b32 v{PR+i}, 0")
    G = lambda t: AF + 4 * t if t < 8 else 72 + 4 * (t - 8)
    VF = PR; OUT = ACC
    def wld(k):
        r = STG + 8 * (k % 3)
        return [(f"ds_read_b128 v[{r+4*h}:{r+4*h+3}], v{WLD} offset:{LW+wm.lds[lb[k]]*2048+h*1024}", ('w', k)) for h in range(2)]
    def wop(b, needs):
        if b in wm.reg: return wm.r8(b)
        k = lb.index(b); needs.append(('w', k)); return f"v[{STG+8*(k%3)}:{STG+8*(k%3)+7}]"
    a.lab("VO_pre")
    for i in range(10): a(f"v_mov_b64 v[{ACC+2*i}:{ACC+2*i+1}], 0")
    for k in range(3):
        for text, tag in wld(k): a(text)
    lg.waitall()
    for _ in range(OPT.get('vdel', 0)): a("s_sleep 1")
    poll_mem(a, "VO", TMP, st)
    sc = Sched(a, lg); busy = set()
    def put(n, text, tag=None, pre=()):
        while n in busy: n += 1
        busy.add(n); sc.fill(n, text, tag, pre); return n
    order = [(sg, i) for sg in range(8) for i in range(3)] + [(8, 2), (9, 2), (8, 0), (9, 0), (8, 1), (9, 1)]
    use = {}
    for n, (sg, i) in enumerate(order):
        needs = [('a', sg)] if sg >= 2 else []
        w = wop((0, i, sg), needs); use[(0, i, sg)] = n
        sc.add(f"v_smfmac_f32_16x16x64_bf16 v[{ACC+4*i}:{ACC+4*i+3}], v[{areg(sg)}:{areg(sg)+3}], {w}, v{IDX}", needs)
    fc = full_chk(TMP)
    for k, x in enumerate(fc): sc.fill(min(k // 2, 2), x)
    sc.fill(2, "s_cbranch_vccnz VO_pre"); sc.fill(2, "s_waitcnt vmcnt(0)"); sc.fill(2, "s_barrier")
    sc.fill(2, a_read(0), ('a', 2)); sc.fill(2, a_read(1), ('a', 3)); busy.add(2)
    for c in range(2, 8): put(1 + c, a_read(c), ('a', c + 2))
    for k in range(3, 8):
        for text, tag in wld(k): put(max(use[lb[k - 3]], 9), text, tag)
    for c in range(6):
        for h in range(2): sc.fill(3 * (c + 3) + h, f"v_mov_b64 v[{AF+4*c+2*h}:{AF+4*c+2*h+1}], 0")
    sc.emit()
    st(0)
    for t in (2, 0, 1):
        r = ACC + 4 * t
        a(*add2(r), f"v_cvt_pk_bf16_f32 v{TMP+t}, v{r}, v{r+1}")
        a(f"ds_write_b32 v{VW}, v{TMP+t} offset:{t*256}")
    for h in range(4): a(f"v_mov_b64 v[{AF+24+2*h}:{AF+24+2*h+1}], 0")
    lg.waitall(); a("s_barrier")
    for k in range(3):
        for jh in range(2):
            a(f"ds_read_b64_tr_b16 v[{VF+4*k+2*jh}:{VF+4*k+2*jh+1}], v{VR} offset:{k*1024+jh*128}"); lg.issue(('vf', k))
    st(2)
    sc = Sched(a, lg); busy = set(); use = {}
    for t in tord:
        for k in range(3):
            needs = [('vf', k)]
            w = wop((1, t, k), needs)
            use[(1, t, k)] = sc.add(f"v_smfmac_f32_16x16x64_bf16 v[{G(t)}:{G(t)+3}], v[{VF+4*k}:{VF+4*k+3}], {w}, v{IDX}", needs)
    for k in (8, 9):
        for text, tag in wld(k): put(use[lb[k - 3]], text, tag)
    rest = []
    for pos, t in enumerate(tord):
        g = G(t); o = OUT + pos
        seq = add2(g) + [f"v_cvt_pk_bf16_f32 v{o}, v{g}, v{g+1}"]
        stx = f"buffer_store_dword v{o}, v{ZA}, {WS}, s{60+t} offen sc1"
        n = 3 * pos + 6
        for k, x in enumerate(seq):
            if n + k < 30: sc.fill(n + k, x)
            else: rest.append(x)
        if n + 3 < 30: sc.at.setdefault(n + 3, []).insert(0, (stx, None, ()))
        else: rest.append(stx)
    sc.emit()
    st(3)
    for x in rest: a(x)
    st(1)
    st.dump(STG)
    a("s_add_u32 s19, s19, 1")
    ex_base(a, "s24", "s19")
    a("s_cmp_lt_u32 s19, 64", "s_cbranch_scc1 VO_step")
    a("s_endpgm")

def role_red(a, st):
    a.lab("M_red")
    st.loaded(); dbgt(a, 3, 4)
    UB = 32; ZB = 64; PA = 72; D = 92; T = 96; PM = 4; MO = 5; FA = 6; LA = 7; LR = 12; SEN = 8
    a(f"v_and_b32 v{T}, 1, v1", f"v_cmp_eq_u32 vcc, 0, v{T}", f"v_mov_b32 v{T}, 0x4444", f"v_mov_b32 v{T+1}, 0xeeee", f"v_cndmask_b32 v{IDX}, v{T+1}, v{T}, vcc")
    a(f"v_and_b32 v{T}, 48, v1", f"v_lshlrev_b32 v{T}, 4, v{T}", f"v_and_b32 v{T+1}, 15, v1", f"v_lshlrev_b32 v{T+1}, 3, v{T+1}", f"v_add_u32 v{PM}, v{T}, v{T+1}")
    a(f"v_lshrrev_b32 v{T+1}, 1, v{T+1}", f"v_add_u32 v13, v{T}, v{T+1}")
    a(f"v_lshrrev_b32 v{T}, 4, v1", f"v_mul_u32_u24 v{T}, 144, v{T}", f"v_and_b32 v{T+1}, 15, v1", f"v_lshlrev_b32 v{T+1}, 2, v{T+1}")
    a("s_mul_i32 s30, s16, 576", f"v_add3_u32 v{LA}, v{T}, v{T+1}, s30")
    a(f"v_and_b32 v{T}, 4, v1", f"v_lshrrev_b32 v{T+1}, 4, v1", f"v_add_u32 v{T}, v{T}, v{T+1}", f"v_mul_u32_u24 v{T}, 72, v{T}")
    a(f"v_and_b32 v{T+1}, 3, v1", f"v_lshlrev_b32 v{T+1}, 4, v{T+1}", f"v_and_b32 v{T+2}, 8, v1", f"v_add3_u32 v{LR}, v{T}, v{T+1}, v{T+2}")
    a("s_lshl_b32 s30, s17, 8", "s_add_u32 s30, s30, 20480", f"v_lshlrev_b32 v{MO}, 2, v1", f"v_add_u32 v{MO}, s30, v{MO}"); vmap(a, MO, T)
    for i in range(4): a(f"v_mov_b32 v{SEN+i}, -1")
    a(f"ds_write2_b32 v{LA}, v{SEN}, v{SEN} offset0:0 offset1:18")
    a("s_mov_b32 s42, 0x11111111", "s_mov_b32 s43, 0x11111111")
    a("s_lshl_b32 s38, s17, 14", "s_lshl_b32 s30, s16, 11", "s_add_u32 s38, s38, s30")
    a("s_mul_i32 s39, s17, 205", "s_lshr_b32 s39, s39, 11", "s_lshl_b32 s39, s39, 7", "s_lshl_b32 s30, s16, 5", "s_add_u32 s39, s39, s30", f"s_add_u32 s39, s39, {UF}")
    a("s_lshl_b32 s40, s17, 15", "s_lshl_b32 s30, s16, 13", "s_add_u32 s40, s40, s30", f"s_add_u32 s40, s40, {U}")
    for q in range(5):
        a(f"s_mul_i32 s30, s16, 5", f"s_add_u32 s30, s30, {q}", "s_lshr_b32 s31, s30, 3", "s_lshl_b32 s31, s31, 13", "s_lshl_b32 s30, s30, 10", f"s_add_u32 s{66+q}, s30, s31")
    a(f"v_and_b32 v{FA}, 7, v1", f"v_lshlrev_b32 v{FA}, 2, v{FA}")
    a("s_lshl_b32 s30, s16, 3", "v_add_u32 v14, s30, v1", "v_lshlrev_b32 v14, 7, v14")
    hu_base(a, "s72", HUQ); hu_base(a, "s71", HUR); a("s_lshl_b32 s30, s17, 7", "s_add_u32 s71, s71, s30", "s_cmp_eq_u32 s16, 0", "s_cselect_b32 s71, s71, 0x7ffffff0")
    a("s_mov_b32 s19, 0")
    a("s_waitcnt lgkmcnt(0)", "s_barrier")
    a("v_mov_b32 v24, 0")
    a.lab("R_step")
    a("s_lshl_b32 s32, s19, 9", "s_add_u32 s32, s32, s39", "s_mov_b32 s35, 0")
    a(f"s_mul_i32 s30, s19, {40*32768}", "s_add_u32 s30, s30, s40", "s_add_u32 s31, s30, 4096")
    a("v_cmp_eq_u32 vcc, 0, v24", "s_cbranch_vccz R_ug")
    a.lab("R_uf")
    a(f"buffer_load_dword v24, v{FA}, {WS}, s32 offen sc1", "s_waitcnt vmcnt(0)")
    a("v_cmp_eq_u32 vcc, 0, v24", "s_cbranch_vccz R_ug")
    a("s_sleep 2", "s_add_u32 s35, s35, 1", f"s_cmp_lt_u32 s35, {SPIN}", "s_cbranch_scc1 R_uf"); fail(a)
    a.lab("R_ug")
    for _ in range(OPT.get('ud', 0)): a("s_sleep 1")
    for i in range(8):
        a(f"buffer_load_dwordx4 v[{UB+4*i}:{UB+4*i+3}], v2, {WS}, s{30+i//4} offen offset:{(i%4)*1024} sc1")
    a(f"buffer_load_dword v24, v{FA}, {WS}, s32 offen offset:512 sc1")
    a("s_add_u32 s34, s19, 1")
    z_base(a, "s26", "s34"); a("s_add_u32 s26, s26, s38")
    for i in range(2): a(f"buffer_store_dwordx4 v[{SEN}:{SEN+3}], v2, {WS}, s26 offen offset:{i*1024} sc1")
    a("s_add_u32 s34, s19, 2", "s_cmp_ge_u32 s34, 64", "s_cbranch_scc1 R_noinit", "s_cmp_lg_u32 s16, 0", "s_cbranch_scc1 R_noinit")
    ex_base(a, "s26", "s34")
    a(f"buffer_store_dword v{SEN}, v{MO}, {WS}, s26 offen sc1")
    a.lab("R_noinit")
    z_base(a, "s26", "s19"); a("s_add_u32 s26, s26, s38")
    ex_base(a, "s25", "s19")
    for q in range(5): a(f"s_add_u32 s{60+q}, s25, s{66+q}")
    a("s_add_u32 s34, s19, 1"); ex_base(a, "s24", "s34")
    a("s_mov_b32 s35, 0")
    if st.on: a("s_waitcnt vmcnt(0)")
    st(0)
    for _ in range(OPT.get('rdel', 0)): a("s_sleep 1")
    a(f"v_xor_b32 v{T}, 4096, v{LA}", f"ds_write2_b32 v{T}, v{SEN}, v{SEN} offset0:0 offset1:18")
    a("v_mov_b32 v15, s34", "s_mov_b32 s73, s71")
    if OPT.get('huq', 1): hu_wait(a, "R", 14, "s72", "s34", 16, OPT.get('hd', 4), "0xff")
    st(4)
    def zl():
        for i in range(8): a(f"buffer_load_dword v{ZB+i}, v13, {WS}, s26 offen offset:{(i//4)*1024+[0,2,1,3][i%4]*64} sc1")
    def pl():
        st(3)
        for q in range(4): a(f"buffer_load_dwordx4 v[{PA+4*q}:{PA+4*q+3}], v2, {WS}, s{60+q} offen sc1")
        for h in range(2): a(f"buffer_load_dwordx2 v[{PA+16+2*h}:{PA+17+2*h}], v{PM}, {WS}, s64 offen offset:{128*h} sc1")
        a("s_add_u32 s35, s35, 1", f"v_mov_b64 v[{D}:{D+1}], 0", f"v_mov_b64 v[{D+2}:{D+3}], 0")
    if OPT.get('zlast'):
        pl(); zl()
        a("s_barrier")
        for _ in range(OPT.get('hr', 0)): a("s_nop 7")
        a("s_mov_b64 exec, 1", f"buffer_store_dword v15, v2, {WS}, s73 offen sc1", "s_mov_b64 exec, -1", "s_mov_b32 s73, 0x7ffffff0")
        for q in range(4):
            a(f"s_waitcnt vmcnt({14-q})")
            a(f"v_smfmac_f32_16x16x64_bf16 v[{D}:{D+3}], v[{PA+4*q}:{PA+4*q+3}], v[{UB+8*q}:{UB+8*q+7}], v{IDX}")
        a("s_branch R_last")
    else:
        zl()
        for _ in range(OPT.get('rz', 0)): a("s_nop 7")
        pl()
        a("s_barrier")
        for _ in range(OPT.get('hr', 0)): a("s_nop 7")
        a("s_branch R_go")
    a.lab("R_zp")
    zl()
    a.lab("R_pp")
    pl()
    a(f"s_cmp_ge_u32 s35, {SPIN}", "s_cbranch_scc1 M_fail")
    a.lab("R_go")
    a("s_mov_b64 exec, 1", f"buffer_store_dword v15, v2, {WS}, s73 offen sc1", "s_mov_b64 exec, -1", "s_mov_b32 s73, 0x7ffffff0")
    for q in range(5):
        if q == 4: a.lab("R_last")
        a(f"s_waitcnt vmcnt({(5-q if q < 4 else 0) + 1})")
        a(f"v_smfmac_f32_16x16x64_bf16 v[{D}:{D+3}], v[{PA+4*q}:{PA+4*q+3}], v[{UB+8*q}:{UB+8*q+7}], v{IDX}")
    st(2)
    a(f"v_max3_u32 v{T}, v{ZB}, v{ZB+1}, v{ZB+2}", f"v_max3_u32 v{T+1}, v{ZB+3}, v{ZB+4}, v{ZB+5}", f"v_max3_u32 v{T}, v{T}, v{ZB+6}, v{ZB+7}", f"v_max_u32 v{T}, v{T}, v{T+1}")
    a(f"v_cmp_eq_u32 s[44:45], -1, v{T}")
    a(f"v_add_f32 v{D}, v{D}, v{D+1}", f"v_add_f32 v{D+2}, v{D+2}, v{D+3}")
    a(f"v_cmp_u_f32 vcc, v{D}, v{D+2}")
    a("s_cbranch_vccnz R_nan")
    a.lab("R_ok")
    a(f"ds_write2_b32 v{LA}, v{D}, v{D+2} offset0:0 offset1:18")
    for w in range(4): a(f"ds_read_b64 v[{T+2*w}:{T+2*w+1}], v{LR} offset:{576*w}")
    for _ in range(OPT.get('rwarm', 8)): a(f"v_mov_b32 v{T+12}, 0")
    a("s_waitcnt lgkmcnt(0)")
    a(f"v_pk_add_f32 v[{T+8}:{T+9}], v[{T}:{T+1}], v[{T+2}:{T+3}]", f"v_pk_add_f32 v[{T+10}:{T+11}], v[{T+4}:{T+5}], v[{T+6}:{T+7}]")
    a(f"v_pk_add_f32 v[{T+8}:{T+9}], v[{T+8}:{T+9}], v[{T+10}:{T+11}]")
    a(f"v_cmp_u_f32 vcc, v{T+8}, v{T+9}", f"v_cvt_pk_bf16_f32 v{T+12}, v{T+8}, v{T+9}")
    a("s_cbranch_vccnz R_nan2")
    a.lab("R_pub")
    if OPT.get('rdw', 1):
        a(f"buffer_store_dword v{T+12}, v{MO}, {WS}, s24 offen sc1")
    else:
        for k in range(1, 4): a(f"v_mov_b32_dpp v{T+12+k}, v{T+12} quad_perm:[{k},{k},{k},{k}] row_mask:0xf bank_mask:0xf")
        a("s_mov_b64 exec, s[42:43]")
        a(f"buffer_store_dwordx4 v[{T+12}:{T+15}], v{MO}, {WS}, s24 offen sc1")
        a("s_mov_b64 exec, -1")
    a.lab("R_next")
    st(1)
    if st.on: a("s_waitcnt lgkmcnt(0)", "s_mov_b32 s90, s35")
    st.dump(T + 16)
    a("s_barrier")
    a(f"v_xor_b32 v{LA}, 4096, v{LA}", f"v_xor_b32 v{LR}, 4096, v{LR}")
    if OPT.get('dbgt'):
        a("s_cmp_lg_u32 s19, 0", "s_cbranch_scc1 R_nd"); dbgt(a, 4, T); a.lab("R_nd")
        a("s_cmp_lg_u32 s19, 8", "s_cbranch_scc1 R_nd2"); dbgt(a, 5, T); a.lab("R_nd2")
    a("s_add_u32 s19, s19, 1", "s_cmp_lt_u32 s19, 63", "s_cbranch_scc1 R_step")
    dbgt(a, 6, T)
    a("s_endpgm")
    a.lab("R_nan")
    a("s_cmp_lg_u64 s[44:45], 0", "s_cbranch_scc1 R_zp")
    a(f"v_max3_u32 v{T}, v{PA+3}, v{PA+7}, v{PA+11}", f"v_max3_u32 v{T+1}, v{PA+15}, v{PA+17}, v{PA+19}", f"v_max_u32 v{T}, v{T}, v{T+1}", f"v_cmp_eq_u32 vcc, -1, v{T}")
    a("s_cbranch_vccnz R_pp")
    chk(a, range(PA, PA + 20), T)
    a("s_cbranch_vccnz R_pp")
    a(f"v_min_u32 v{D}, -2, v{D}", f"v_min_u32 v{D+2}, -2, v{D+2}")
    a("s_branch R_ok")
    a.lab("R_nan2")
    chk(a, range(T, T + 8), T + 16)
    a("s_cbranch_vccnz R_next")
    a(f"v_min_u32 v{T+12}, -2, v{T+12}")
    a("s_branch R_pub")

def xn_dma_ops(seg_s="s52", lds_s="s53"):
    return [[f"s_add_u32 m0, {lds_s}, {1024*i}", f"s_add_u32 s54, {seg_s}, {1024*i}", f"buffer_load_dwordx4 v2, {WS}, s54 offen sc1 lds"] for i in range(10)]

def xn_addr(a, seg, ldsbase):
    a(f"s_min_u32 s52, {seg}, 63", "s_mul_i32 s52, s52, 40960", "s_mul_i32 s53, s16, 10240", "s_add_u32 s52, s52, s53", f"s_add_u32 s52, s52, {XN}", f"s_add_u32 s53, s53, {ldsbase}")

def x_first(a):
    xn_addr(a, "s19", LX)
    for op in xn_dma_ops(): a(*op)
    return 10

def x_next(a, lab):
    a("s_mov_b32 s19, s34", "s_cmp_lt_u32 s19, 64", f"s_cbranch_scc1 {lab}")

def x_succ(a):
    a(f"s_cmp_lt_u32 s19, {OPT.get('lead', 4)}", "s_cselect_b32 s34, 1, 2", "s_add_u32 s34, s34, s19")

def x_lims(a):
    a(f"s_mul_i32 s19, s18, {OPT.get('lead', 4)+1}")

def role_xqk(a, st):
    global XST
    XST = [" sc1", " sc1 nt", " sc0 sc1", ""][OPT.get('xst', 0)]
    blocks = [(t, k) for k in range(10) for t in range(6)]
    wm = Wmap(blocks, {(5, k) for k in range(10)})
    a.lab("M_xqk")
    a("s_cmp_lt_u32 s16, 2", "s_cselect_b32 s30, s40, s42", "s_cselect_b32 s31, s41, s43")
    srd(a, 8, 30, 640 * 12288)
    a("s_mul_i32 s36, s17, 384", "s_and_b32 s30, s16, 1", "s_mul_i32 s30, s30, 192", "s_add_u32 s36, s36, s30")
    pieces = []
    for ks in init.KORD:
        for p in range(2):
            so = lambda dst, o=ks*32*12288+p*96: a(f"s_add_u32 {dst}, s36, {o}")
            pieces.append(('A', "s[8:11]", so, [(3 * p + t, ks // 2) for t in range(3)], ks % 2))
    x_lims(a)
    loader(a, pieces, wm, lambda: x_first(a)); dbgt(a, 2, 4); st.loaded()
    AC = 16; XF = 64; WF = 88; O = 100; XA = 4; WA = 5; ONE = 7
    a("s_mul_i32 s30, s16, 20480", f"v_add_u32 v{WA}, s30, v2", f"v_mov_b32 v{ONE}, 1")
    a(f"s_mov_b32 s38, {QX}", f"s_mov_b32 s30, {KX}", "s_cmp_lt_u32 s16, 2", "s_cselect_b32 s38, s38, s30")
    a("s_and_b32 s30, s16, 1", "s_mul_i32 s30, s30, 3072", "s_add_u32 s38, s38, s30")
    a(f"s_mov_b32 s26, {LX}", "s_mov_b32 s39, 0x7ffffff0")
    a("s_waitcnt vmcnt(0)")
    lg = Cnt(a, "lgkmcnt", 15)
    a.lab("XQ_seg")
    a("s_waitcnt vmcnt(6)", "s_barrier")
    st(0)
    a(f"v_add_u32 v{XA}, s26, v2")
    def rd(ks):
        o = []
        for m in range(2):
            r = XF + 8 * (ks % 3) + 4 * m
            o.append((f"ds_read_b128 v[{r}:{r+3}], v{XA} offset:{(m*20+ks)*1024}", ks))
        r = WF + 4 * (ks % 3)
        o.append((f"ds_read_b128 v[{r}:{r+3}], v{WA} offset:{LW+ks*1024}", ks))
        return o
    for x in rd(0) + rd(1): a(x[0]); lg.issue(x[1])
    a(f"s_xor_b32 s26, s26, {LX ^ (LX+40960)}")
    x_succ(a); xn_addr(a, "s34", "s26")
    sc = Sched(a, lg)
    dm = xn_dma_ops()
    for ks in range(20):
        for t in range(6):
            w = wm.r4((t, ks // 2), ks % 2) if t < 5 else f"v[{WF+4*(ks%3)}:{WF+4*(ks%3)+3}]"
            for m in range(2):
                d = AC + 4 * (m * 6 + t); x = XF + 8 * (ks % 3) + 4 * m
                sc.add(f"v_mfma_f32_16x16x32_bf16 v[{d}:{d+3}], {w}, v[{x}:{x+3}], " + ("0" if ks == 0 else f"v[{d}:{d+3}]"), [ks])
        if ks + 2 < 20:
            for k, x in enumerate(rd(ks + 2)): sc.fill(12 * ks + k, *x)
        if ks == 5:
            sc.fill(12 * ks + 5, "s_waitcnt vmcnt(0)"); sc.fill(12 * ks + 6, "s_mov_b64 exec, 1")
            sc.fill(12 * ks + 6, f"buffer_store_dword v{ONE}, v2, {WS}, s39 offen sc1"); sc.fill(12 * ks + 6, "s_mov_b64 exec, -1")
        if 6 <= ks < 16:
            op = dm[ks - 6]; sc.fill(12 * ks + 5, op[0]); sc.fill(12 * ks + 5, op[1]); sc.fill(12 * ks + 6, op[2])
    sc.emit()
    a("s_lshl_b32 s30, s19, 5", "s_add_u32 s30, s30, s17", "s_lshl_b32 s39, s30, 4", "s_mul_i32 s30, s30, 12288", "s_add_u32 s30, s30, s38")
    a("s_lshl_b32 s32, s16, 2", "s_add_u32 s39, s39, s32", f"s_add_u32 s39, s39, {KXF}")
    for m in range(2):
        for f in range(3):
            d = AC + 4 * (m * 6 + 2 * f); o = d
            for j in range(4): a(f"v_cvt_pk_bf16_f32 v{o+j}, v{d+2*j}, v{d+2*j+1}")
            a(f"buffer_store_dwordx4 v[{o}:{o+3}], v2, {WS}, s30 offen offset:{f*1024}{XST}")
        if m == 0: a("s_add_u32 s30, s30, 6144")
    if st.on: st(1); st.dump(O); a("s_waitcnt vmcnt(8)")
    a("s_cmp_ge_u32 s19, 1", "s_cbranch_scc1 XQ_lazy")
    setflag(a, "s39", ONE)
    a.lab("XQ_lazy")
    x_next(a, "XQ_seg")
    setflag(a, "s39", ONE)
    a("s_branch M_second")

def role_xvo(a, st):
    wm = vo_wmap()
    LV = LX + 40960
    a.lab("M_xvo")
    vo_srds(a)
    x_lims(a)
    loader(a, vo_pieces(a, False), wm, lambda: x_first(a)); st.loaded()
    AC = 16; XF = 40; VF = 16; WF = 64; G = 80; O = 96; XA = 4; WA = 5; ONE = 7; VW = 8; VA = 9
    a("s_mul_i32 s30, s16, 20480", f"v_add_u32 v{WA}, s30, v2", f"v_mov_b32 v{ONE}, 1")
    a(f"v_add_u32 v{XA}, {LX}, v2", f"v_add_u32 v{VA}, {LV}, v2")
    a(f"v_and_b32 v{VW}, 0xff, v2", "v_lshrrev_b32 v10, 5, v1", "v_lshlrev_b32 v10, 8, v10", "v_and_b32 v11, 16, v1", "v_lshrrev_b32 v11, 1, v11")
    a(f"v_add3_u32 v{VW}, v{VW}, v10, v11", "s_mul_i32 s30, s16, 1536", f"s_add_u32 s30, s30, {LV}", f"v_add_u32 v{VW}, s30, v{VW}")
    a(f"s_mul_i32 s38, s16, {10*32768}", "s_lshl_b32 s30, s17, 10", "s_add_u32 s38, s38, s30", f"s_add_u32 s38, s38, {U}")
    a("s_lshl_b32 s47, s16, 7", "s_lshl_b32 s30, s17, 2", "s_add_u32 s47, s47, s30", f"s_add_u32 s47, s47, {UF}")
    a("s_mov_b32 s39, 0x7ffffff0")
    a("s_waitcnt vmcnt(0)")
    lg = Cnt(a, "lgkmcnt", 15)
    a.lab("XV_seg")
    a("s_waitcnt vmcnt(7)", "s_barrier")
    st(0)
    def rd(ks):
        return [(f"ds_read_b128 v[{XF+8*(ks%3)+4*m}:{XF+8*(ks%3)+4*m+3}], v{XA} offset:{(m*20+ks)*1024}", ks) for m in range(2)]
    for x in rd(0) + rd(1): a(x[0]); lg.issue(x[1])
    x_succ(a); xn_addr(a, "s34", LX)
    def wld(t):
        r = WF + 8 * (t % 2)
        return [(f"ds_read_b128 v[{r+4*h}:{r+4*h+3}], v{WA} offset:{LW+wm.lds[(1,t,2)]*2048+h*1024}", ('w', t)) for h in range(2)]
    sc = Sched(a, lg)
    for ks in range(20):
        for t in range(3):
            for m in range(2):
                d = AC + 4 * (m * 3 + t); x = XF + 8 * (ks % 3) + 4 * m
                sc.add(f"v_mfma_f32_16x16x32_bf16 v[{d}:{d+3}], {wm.r4((0,t,ks//2),ks%2)}, v[{x}:{x+3}], " + ("0" if ks == 0 else f"v[{d}:{d+3}]"), [ks])
        if ks + 2 < 20:
            for k, x in enumerate(rd(ks + 2)): sc.fill(6 * ks + k, *x)
        else:
            for k, x in enumerate(wld(ks - 18)): sc.fill(6 * ks + k, *x)
        if ks == 12:
            sc.fill(6 * ks + 3, "s_waitcnt vmcnt(0)"); sc.fill(6 * ks + 4, "s_mov_b64 exec, 1")
            sc.fill(6 * ks + 4, f"buffer_store_dword v{ONE}, v2, {WS}, s39 offen sc1"); sc.fill(6 * ks + 4, "s_mov_b64 exec, -1")
    sc.emit()
    a(f"s_mul_i32 s30, s19, {40*32768}", "s_add_u32 s30, s30, s38", "s_lshl_b32 s39, s19, 9", "s_add_u32 s39, s39, s47")
    for t in range(3):
        for m in range(2):
            d = AC + 4 * (m * 3 + t); o = G + 2 * (m * 3 + t)
            a(f"v_cvt_pk_bf16_f32 v{o}, v{d}, v{d+1}", f"v_cvt_pk_bf16_f32 v{o+1}, v{d+2}, v{d+3}")
            a(f"ds_write_b64 v{VW}, v[{o}:{o+1}] offset:{m*6144+t*512}")
    lg.waitall(); a("s_barrier")
    for kf in range(6):
        for m in range(2):
            i = m * 6 + kf
            a(f"ds_read_b128 v[{VF+4*i}:{VF+4*i+3}], v{VA} offset:{i*1024}"); lg.issue(('v', kf))
    def out(t):
        g = G + 8 * (t % 2); o = O + 4 * (t % 2)
        return [f"v_cvt_pk_bf16_f32 v{o+j}, v{g+2*j}, v{g+2*j+1}" for j in range(4)] + \
               [f"buffer_store_dwordx4 v[{o}:{o+3}], v2, {WS}, s30 offen{XST}", "s_add_u32 s30, s30, 32768"]
    sc = Sched(a, lg)
    dm = xn_dma_ops()
    for t in range(10):
        for kf in range(6):
            needs = [('v', kf)]
            if kf < 4: w = wm.r4((1, t, kf // 2), kf % 2)
            else: w = f"v[{WF+8*(t%2)+4*(kf%2)}:{WF+8*(t%2)+4*(kf%2)+3}]"; needs.append(('w', t))
            for m in range(2):
                d = G + 8 * (t % 2) + 4 * m; x = VF + 4 * (m * 6 + kf)
                sc.add(f"v_mfma_f32_16x16x32_bf16 v[{d}:{d+3}], v[{x}:{x+3}], {w}, " + ("0" if kf == 0 else f"v[{d}:{d+3}]"), needs)
        if t >= 1:
            if t + 1 < 10:
                for k, x in enumerate(wld(t + 1)): sc.fill(12 * t + k, *x)
            for k, x in enumerate(out(t - 1)): sc.fill(12 * t + 5 + k, x)
        if t < 5:
            for k in range(2):
                op = dm[2 * t + k]; sc.fill(12 * t + 2 + k, op[0]); sc.fill(12 * t + 2 + k, op[1]); sc.fill(12 * t + 2 + k, op[2])
    sc.emit()
    for x in out(9): a(x)
    if st.on: st(1); st.dump(O + 8); a("s_waitcnt vmcnt(9)")
    a("s_cmp_ge_u32 s19, 1", "s_cbranch_scc1 XV_lazy")
    setflag(a, "s39", ONE)
    a.lab("XV_lazy")
    x_next(a, "XV_seg")
    setflag(a, "s39", ONE)
    a("s_branch M_second")

def role_table(mp):
    per = [[] for _ in range(8)]
    QKs = [(1 << 16) | h for h in range(32)]; VOs = [(2 << 16) | h for h in range(32)]; Rs = [(3 << 16) | t for t in range(40)]
    if mp == 0: per[0] = QKs[:16] + VOs[:16]; per[1] = QKs[16:] + VOs[16:]; per[2] = Rs[:20]; per[3] = Rs[20:]
    if mp == 1: per[0] = QKs; per[1] = VOs; per[2] = Rs[:20]; per[3] = Rs[20:]
    if mp == 2: per[0] = QKs[:16] + Rs[:10]; per[1] = QKs[16:] + Rs[10:20]; per[2] = VOs[:16] + Rs[20:30]; per[3] = VOs[16:] + Rs[30:]
    if mp == 3:
        for x in range(4): per[x] = QKs[8*x:8*x+8] + VOs[8*x:8*x+8] + Rs[10*x:10*x+10]
    if mp == 4: per[0] = QKs[:16] + VOs[:4]; per[1] = QKs[16:] + VOs[4:8]; per[2] = VOs[8:] + Rs[:8]; per[3] = Rs[8:]
    if mp == 5: per[0] = QKs[:16] + VOs[:4]; per[1] = QKs[16:] + VOs[4:8]; per[2] = VOs[8:20] + Rs[:20]; per[3] = VOs[20:] + Rs[20:]
    if mp == 6: per[0] = QKs[:11] + VOs[:11]; per[1] = QKs[11:22] + VOs[11:22]; per[2] = QKs[22:] + VOs[22:] + Rs[:8]; per[3] = Rs[8:]
    for x in range(4):
        per[4 + x] = [((4 + k // 2) << 16) | ((k % 2) << 8) | ((8 * x + h + 8 * (k // 2) * OPT.get('xoff', 1)) % 32) for k in range(4) for h in range(8)]
    if OPT.get('xmap'):
        for x in range(4): per[4 + x] = [((4 + x // 2) << 16) | (k << 8) | (16 * (x % 2) + h) for k in range(2) for h in range(16)]
    tb = [0] * 256
    for x in range(8):
        assert len(per[x]) <= 32
        for r, e in enumerate(per[x]): tb[r * 8 + x] = e
    return tb

def second_table(tb):
    def ent(kind, part, start, stride, end=64): return (kind << 28) | (end << 21) | (stride << 14) | (start << 7) | part
    def groups(kind, nparts, n): return [[ent(kind, p, g, n) for p in range(nparts)] for g in range(n)]
    t2 = [0] * 256
    spare = [i for i in range(256) if tb[i] == 0]
    spare.sort(key=lambda i: (i % 8, i // 8))
    na = OPT.get('ga', 3)
    for i, e in zip(spare, [e for g in groups(1, 8, na) for e in g]): t2[i] = e
    gs = groups(2, 10, OPT.get('gb', 6)) + groups(3, 12, OPT.get('gc', 3)) + groups(4, 10, OPT.get('gd', 3))
    free = {x: [r * 8 + x for r in range(32)] for x in range(4, 8)}
    gs.sort(key=lambda g: -len(g))
    left = []
    for k, g in enumerate(gs):
        x = max(free, key=lambda x: len(free[x]))
        if len(free[x]) >= len(g):
            for e in g: t2[free[x].pop(0)] = e
        else: left += g
    rest = [i for x in free for i in free[x]]
    assert len(left) <= len(rest)
    for i, e in zip(rest, left): t2[i] = e
    return t2

def gen_mega(a, name, stamps=False):
    st = St(a, stamps)
    kstart(a, name)
    a("s_cmp_ge_u32 s2, 256", "s_cbranch_scc1 M_done")
    a(f"s_load_dwordx8 s[40:47], s[0:1], {A_WQ}", f"s_load_dwordx4 s[48:51], s[0:1], {A_DBG}")
    a("v_and_b32 v1, 63, v0", "v_lshrrev_b32 v2, 6, v0", "v_readfirstlane_b32 s16, v2", "v_lshlrev_b32 v2, 4, v1")
    a("s_getreg_b32 s3, hwreg(HW_REG_XCC_ID)", "s_and_b32 s3, s3, 7", "s_and_b32 s30, s2, 0xf8", "s_or_b32 s3, s3, s30", "s_movk_i32 s63, 128")
    a("s_waitcnt lgkmcnt(0)")
    srd_ws(a, 4, 50)
    st.init()
    if OPT.get('dbgt'): a("s_memrealtime s[98:99]")
    a.lab("M_lookup")
    a("s_getpc_b64 s[30:31]")
    a.lab("M_pc")
    a("s_lshl_b32 s32, s3, 3", "s_add_u32 s32, s32, M_table-M_pc", "s_load_dwordx2 s[22:23], s[30:31], s32", "s_waitcnt lgkmcnt(0)")
    if OPT.get('ldonly'):
        if OPT.get('pfonly'):
            a("s_lshr_b32 s60, s22, 24", "s_cmp_eq_u32 s60, 0", "s_cbranch_scc1 M_lo2", "s_sub_u32 s60, s60, 1")
            init.prefetch(a, "Q", 0, 10, OPT.get('pace'))
            a("s_waitcnt vmcnt(0)", "s_bfe_u32 s61, s22, 0x80010", "s_cmp_ge_u32 s61, 4", "s_cbranch_scc1 M_lo2")
            st.loaded()
            a.lab("M_lo2")
        a("s_bfe_u32 s61, s22, 0x80010", "s_bfe_u32 s62, s22, 0x80008", "s_add_u32 s62, s62, 1", "s_cmp_ge_u32 s61, 4", "s_cselect_b32 s62, s62, 0")
        a(f"s_lshr_b32 s62, {OPT['ldonly']}, s62", "s_bitcmp0_b32 s62, 0", "s_cbranch_scc1 M_done", "s_cmp_eq_u32 s61, 3", "s_cbranch_scc1 M_done", "s_cmp_eq_u32 s61, 0", "s_cbranch_scc1 M_done", "s_branch M_roles")
    a("s_lshr_b32 s60, s22, 24", "s_cmp_lg_u32 s60, 0", "s_cbranch_scc0 M_claim", "s_sub_u32 s60, s60, 1", "s_branch I_start")
    a.lab("M_claim")
    init.claim(a, "M_roles")
    a.lab("M_roles")
    a("s_and_b32 s17, s22, 0xff", "s_bfe_u32 s18, s22, 0x80008", "s_bfe_u32 s22, s22, 0x80010")
    if OPT.get('solo'): a("s_cmp_ge_u32 s22, 3", "s_cbranch_scc1 M_done")
    if OPT.get('solo') == 2: a("s_cmp_lg_u32 s17, 0", "s_cbranch_scc1 M_done")
    for k, nm in ((1, "M_qk"), (2, "M_vo"), (3, "M_red"), (4, "M_xqk"), (5, "M_xvo")):
        a(f"s_cmp_eq_u32 s22, {k}", f"s_cbranch_scc1 {nm}")
    a.lab("M_second")
    dbgt(a, 7, 4)
    a("s_waitcnt vmcnt(0) lgkmcnt(0)", "s_barrier")
    a("s_and_b32 s17, s23, 0x7f", "s_bfe_u32 s19, s23, 0x70007", "s_bfe_u32 s18, s23, 0x7000e", "s_bfe_u32 s59, s23, 0x70015", "s_lshr_b32 s22, s23, 28")
    if not OPT.get('nopost'):
        for k, nm in ((1, "P_a"), (2, "P_b"), (3, "P_c"), (4, "P_d")):
            a(f"s_cmp_eq_u32 s22, {k}", f"s_cbranch_scc1 {nm}")
    a("s_endpgm")
    a.lab("M_again")
    a("s_cmp_lg_u32 s63, 128", "s_cbranch_scc1 M_fail")
    a("s_mov_b32 s3, s2", "s_movk_i32 s63, 192", "s_barrier", "s_branch M_lookup")
    a.lab("M_fail")
    a("s_mov_b64 exec, 1", "v_mov_b32 v3, 0", "v_mov_b32 v4, 0xdead", "global_store_dword v3, v4, s[48:49]")
    a.lab("M_done")
    a("s_endpgm")
    role_red(a, st); role_qk(a, st); role_vo(a, st); role_xqk(a, st); role_xvo(a, st)
    init.gen_init(a, 64, OPT)
    import roles2
    roles2.role_a(a, st); roles2.role_b(a, st); roles2.role_c(a, st); roles2.role_d(a, st)
    a.raw(".p2align 3\n.type M_table,@object\nM_table:")
    tb = role_table(OPT.get('map', 0)); t2 = second_table(tb)
    idle = [i for i in range(256) if (tb[i] >> 16) in (0, 3)]
    late = [i for i in range(256) if (tb[i] >> 16) in (4, 5) and (tb[i] >> 8) & 1]
    assert len(idle) == 64 and len(late) == 64
    tb = list(tb)
    for k, i in enumerate(idle + late): tb[i] |= (k + 1) << 24
    for i in range(0, 256, 4): a.raw("  .long " + ", ".join(f"{hex(x)}, {hex(y)}" for x, y in zip(tb[i:i+4], t2[i:i+4])))
    return kdesc(name, 512, 256)
```

```python
from common import *
from k0 import ln_core
from mega import z_base
WS = "s[4:7]"

def pro(a, name, nwg, lab, ptrs=()):
    kstart(a, name)
    a(f"s_cmp_ge_u32 s2, {nwg}", f"s_cbranch_scc1 {lab}_done")
    a(f"s_load_dwordx2 s[24:25], s[0:1], {A_WS}")
    for d, off in ptrs: a(f"s_load_dwordx2 s[{d}:{d+1}], s[0:1], {off}")
    a("v_and_b32 v1, 63, v0", "v_lshrrev_b32 v2, 6, v0", "v_readfirstlane_b32 s16, v2", "v_lshlrev_b32 v2, 4, v1")
    a("s_waitcnt lgkmcnt(0)")
    srd_ws(a, 4, 24)

def dma(a, n, soff, lds):
    for i in range(n):
        a(f"s_add_u32 m0, {lds}, {1024*i}", f"buffer_load_dwordx4 v2, {WS}, {soff} offen lds", f"s_add_u32 {soff}, {soff}, 1024")

def gen_att(a, name):
    pro(a, name, 512, "KA")
    Q = 16; K = 64; M = 112; T = 136; E = 160
    a("s_lshl_b32 s17, s2, 2", "s_add_u32 s17, s17, s16")
    a("s_mul_i32 s18, s17, 12288", f"s_add_u32 s19, s18, {KX}", f"s_add_u32 s18, s18, {QX}", "s_mul_i32 s20, s17, 6144", f"s_add_u32 s20, s20, {KM}")
    for base, s, n in ((Q, 18, 12), (K, 19, 12), (M, 20, 6)):
        for i in range(n):
            a(f"buffer_load_dwordx4 v[{base+4*i}:{base+4*i+3}], v2, {WS}, s{s} offen offset:{(i%4)*1024}")
            if i % 4 == 3: a(f"s_add_u32 s{s}, s{s}, 4096")
    a("v_and_b32 v3, 15, v1", "v_lshrrev_b32 v4, 4, v1", "v_lshlrev_b32 v4, 2, v4", "v_sub_u32 v3, v3, v4")
    for r in range(4): a(f"v_cmp_le_i32 s[{30+2*r}:{31+2*r}], {r}, v3")
    a("s_mov_b32 s38, 0x3d93cd3a", "s_mov_b32 s39, 0x3fb8aa3b", "v_mov_b32 v5, 0xce6e6b28")
    a("s_lshr_b32 s21, s17, 5", "s_and_b32 s22, s17, 31", "s_mul_i32 s21, s21, 81920", f"s_add_u32 s21, s21, {PX}")
    a("s_lshl_b32 s23, s22, 10", "s_add_u32 s23, s23, s21")
    a("s_lshl_b32 s22, s22, 8", "s_add_u32 s22, s22, s21", "s_add_u32 s22, s22, 32768")
    a("v_and_b32 v6, 0xff, v2", "v_and_b32 v7, 16, v1", "v_lshrrev_b32 v7, 1, v7", "v_add_u32 v6, v6, v7")
    a("s_waitcnt vmcnt(6)")
    def mm(t, A, m, f):
        d = T + 4 * t
        a(f"v_mfma_f32_16x16x32_bf16 v[{d}:{d+3}], v[{A}:{A+3}], v[{Q+4*(6*m+f)}:{Q+4*(6*m+f)+3}], " + ("0" if f == 0 else f"v[{d}:{d+3}]"))
    for f in range(6):
        mm(0, K + 4 * f, 0, f); mm(1, K + 4 * f, 1, f); mm(2, K + 24 + 4 * f, 1, f)
    a("s_waitcnt vmcnt(0)")
    for f in range(6):
        mm(3, M + 4 * f, 0, f); mm(4, M + 4 * f, 1, f)
    for i in range(0, 20, 2):
        r = T + i
        a(f"v_cvt_pk_bf16_f32 v8, v{r}, v{r+1}", f"v_lshlrev_b32 v{r}, 16, v8", f"v_and_b32 v{r+1}, 0xffff0000, v8")
        a(f"v_mul_f32 v{r}, s38, v{r}", f"v_mul_f32 v{r+1}, s38, v{r+1}")
        a(f"v_cvt_pk_bf16_f32 v8, v{r}, v{r+1}", f"v_lshlrev_b32 v{r}, 16, v8", f"v_and_b32 v{r+1}, 0xffff0000, v8")
    for t in (0, 2):
        for r in range(4): a(f"v_cndmask_b32 v{T+4*t+r}, v5, v{T+4*t+r}, s[{30+2*r}:{31+2*r}]")
    for m, tl in ((0, (0, 3)), (1, (1, 2, 4))):
        rs = [T + 4 * t + r for t in tl for r in range(4)]
        a(f"v_max3_f32 v10, v{rs[0]}, v{rs[1]}, v{rs[2]}")
        for i in range(3, len(rs) - 1, 2): a(f"v_max3_f32 v10, v10, v{rs[i]}, v{rs[i+1]}")
        a(f"v_max_f32 v10, v10, v{rs[-1]}")
        xsum(a, "v_max_f32", 10, 11)
        a("v_mul_f32 v10, s39, v10")
        for r in rs: a(f"v_fma_f32 v{r}, v{r}, s39, -v10")
        for r in rs: a(f"v_exp_f32 v{r}, v{r}")
        a(f"v_add_f32 v12, v{rs[-4]}, v{rs[-3]}", f"v_add_f32 v13, v{rs[-2]}, v{rs[-1]}", "v_add_f32 v12, v12, v13", "v_mul_f32 v12, 0.5, v12")
        for r in rs[:-4]: a(f"v_add_f32 v12, v12, v{r}")
        xsum(a, "v_add_f32", 12, 11)
        a("v_rcp_f32 v12, v12")
        for r in rs: a(f"v_mul_f32 v{r}, v{r}, v12")
        o = E + 8 * m
        a(f"v_cvt_pk_bf16_f32 v{o}, v{rs[0]}, v{rs[1]}", f"v_cvt_pk_bf16_f32 v{o+1}, v{rs[2]}, v{rs[3]}")
        if m == 0: a(f"v_mov_b32 v{o+2}, 0", f"v_mov_b32 v{o+3}, 0")
        else: a(f"v_cvt_pk_bf16_f32 v{o+2}, v{rs[4]}, v{rs[5]}", f"v_cvt_pk_bf16_f32 v{o+3}, v{rs[6]}, v{rs[7]}")
        a(f"v_cvt_pk_bf16_f32 v{o+4}, v{rs[-4]}, v{rs[-3]}", f"v_cvt_pk_bf16_f32 v{o+5}, v{rs[-2]}, v{rs[-1]}")
        a(f"buffer_store_dwordx4 v[{o}:{o+3}], v2, {WS}, s23 offen")
        a("s_mov_b32 exec_hi, 0", f"buffer_store_dwordx2 v[{o+4}:{o+5}], v6, {WS}, s22 offen", "s_mov_b32 exec_hi, -1")
        if m == 0: a("s_add_u32 s22, s22, 40960", "s_add_u32 s23, s23, 40960")
    a.lab("KA_done"); a("s_endpgm")
    return kdesc(name, 176, 176)

def seg_part(a, nparts, magic):
    a(f"s_mul_i32 s17, s2, {magic}", "s_lshr_b32 s17, s17, 16", f"s_mul_i32 s18, s17, {nparts}", "s_sub_u32 s18, s2, s18")
for t_ in range(768): assert (t_ * 6554) >> 16 == t_ // 10 and (t_ * 5462) >> 16 == t_ // 12

def half_frag_off(a, dst, t):
    a(f"v_and_b32 v{dst}, 0xff, v2", f"v_lshrrev_b32 v{t}, 5, v1", f"v_lshlrev_b32 v{t}, 8, v{t}", f"v_add_u32 v{dst}, v{dst}, v{t}")
    a(f"v_and_b32 v{t}, 16, v1", f"v_lshrrev_b32 v{t}, 1, v{t}", f"v_add_u32 v{dst}, v{dst}, v{t}")

def row_off(a, dst, t):
    a(f"v_and_b32 v{dst}, 15, v1", f"v_mul_u32_u24 v{dst}, 1280, v{dst}", f"v_lshrrev_b32 v{t}, 4, v1", f"v_lshlrev_b32 v{t}, 3, v{t}", f"v_add_u32 v{dst}, v{dst}, v{t}")

def resid(a, D, R, O):
    for h in range(2):
        a(f"v_cvt_pk_bf16_f32 v{O+h}, v{D+2*h}, v{D+2*h+1}", f"v_lshlrev_b32 v{D+2*h}, 16, v{O+h}", f"v_and_b32 v{D+2*h+1}, 0xffff0000, v{O+h}")
        a(f"v_lshlrev_b32 v{O+h}, 16, v{R+h}", f"v_add_f32 v{D+2*h}, v{D+2*h}, v{O+h}", f"v_and_b32 v{O+h}, 0xffff0000, v{R+h}", f"v_add_f32 v{D+2*h+1}, v{D+2*h+1}, v{O+h}")
        a(f"v_cvt_pk_bf16_f32 v{O+h}, v{D+2*h}, v{D+2*h+1}")

def gemm_tile(a, nks, W, XF, D, mstride, wwait):
    lg = Cnt(a, "lgkmcnt", 15)
    def rd(ks):
        for m in range(2):
            r = XF + 8 * (ks % 4) + 4 * m; off = (m * mstride + ks) * 1024
            a(f"ds_read_b128 v[{r}:{r+3}], v{3 if off < 65536 else 4} offset:{off % 65536}"); lg.issue(ks)
    for ks in range(3): rd(ks)
    for ks in range(nks):
        wwait(ks)
        lg.wait(ks)
        for m in range(2):
            x = XF + 8 * (ks % 4) + 4 * m; d = D + 4 * m
            a(f"v_mfma_f32_16x16x32_bf16 v[{d}:{d+3}], v[{W+4*ks}:{W+4*ks+3}], v[{x}:{x+3}], " + ("0" if ks == 0 else f"v[{d}:{d+3}]"))
        if ks + 3 < nks: rd(ks + 3)

def gen_pz(a, name):
    pro(a, name, 640, "KB", [(40, A_X)])
    srd(a, 8, 40, 2048 * 1280)
    W = 64; XF = 24; D = 16; R = 8; O = 12
    seg_part(a, 10, 6554)
    a("v_lshlrev_b32 v3, 2, v1", f"s_mov_b32 s30, {PAR}", f"buffer_load_dword v4, v3, {WS}, s30 offen")
    a("s_mul_i32 s30, s17, 81920", "s_mul_i32 s31, s16, 20480", "s_add_u32 s30, s30, s31", f"s_add_u32 s30, s30, {PX}")
    dma(a, 20, "s30", "s31")
    a("s_lshl_b32 s18, s18, 2", "s_add_u32 s18, s18, s16")
    a("s_mul_i32 s30, s17, 40", "s_add_u32 s30, s30, s18", "s_lshl_b32 s30, s30, 15", f"s_add_u32 s30, s30, {U}")
    for i in range(32):
        a(f"buffer_load_dwordx4 v[{W+4*i}:{W+4*i+3}], v2, {WS}, s30 offen offset:{(i%4)*1024}")
        if i % 4 == 3: a("s_add_u32 s30, s30, 4096")
    a("s_waitcnt vmcnt(32)")
    a("v_and_b32 v4, 1, v4", "v_cmp_eq_u32 s[20:21], 1, v4", "s_nop 4")
    z_base(a, "s26", "s17"); a("s_lshl_b32 s30, s18, 14", "s_add_u32 s26, s26, s30")
    a("v_and_b32 v5, 48, v1", "v_lshlrev_b32 v5, 4, v5", "v_and_b32 v6, 15, v1", "v_lshlrev_b32 v6, 2, v6", "v_add_u32 v5, v5, v6")
    row_off(a, 6, 7)
    a("s_mul_i32 s30, s17, 40960", "s_lshl_b32 s31, s18, 5", "s_add_u32 s30, s30, s31", "s_add_u32 s31, s30, 20480")
    a("s_barrier")
    a("v_mov_b32 v3, v2", "v_add_u32 v4, 0x10000, v2")
    def wwait(ks):
        if ks < 32 and ks % 2 == 0:
            if ks < 16: a(f"s_waitcnt vmcnt({30-ks})")
            else: a(f"s_waitcnt vmcnt({30-ks+34})")
        if ks == 14:
            for i in range(32):
                a(f"buffer_load_dword v{W+128+i}, v5, {WS}, s26 offen offset:{((i//4)%4)*1024+(i%4)*64}")
                if i == 15: a("s_add_u32 s26, s26, 4096")
            for m in range(2): a(f"buffer_load_dwordx2 v[{R+2*m}:{R+2*m+1}], v6, s[8:11], s{30+m} offen")
        if ks == 32: a("s_waitcnt vmcnt(0)")
    gemm_tile(a, 40, W, XF, D, 40, wwait)
    half_frag_off(a, 6, 7)
    a("s_mul_i32 s30, s17, 40960", "s_lshl_b32 s31, s18, 9", "s_add_u32 s30, s30, s31", f"s_add_u32 s30, s30, {HB}", "s_add_u32 s31, s30, 20480")
    for m in range(2):
        resid(a, D + 4 * m, R + 2 * m, O + 2 * m)
        a(f"buffer_store_dwordx2 v[{O+2*m}:{O+2*m+1}], v6, {WS}, s{30+m} offen")
    a.lab("KB_done"); a("s_endpgm")
    return kdesc(name, 224, 224)

def gen_ln2(a, name):
    pro(a, name, 128, "KL")
    X = 20; F = 40; T = 8
    a("s_mul_i32 s17, s2, 20480", "s_mul_i32 s18, s16, 5120", "s_add_u32 s17, s17, s18", f"s_add_u32 s18, s17, {HB}", f"s_add_u32 s17, s17, {HN}")
    for i in range(5):
        a(f"buffer_load_dwordx4 v[{X+4*i}:{X+4*i+3}], v2, {WS}, s18 offen", "s_add_u32 s18, s18, 1024")
    a("v_and_b32 v4, 15, v1", "s_lshl_b32 s19, s16, 6", "v_lshlrev_b32 v7, 2, v4", "v_add_u32 v7, s19, v7")
    a("s_waitcnt vmcnt(0)")
    ln_core(a, X, F, T, 7)
    for i in range(5):
        a(f"buffer_store_dwordx4 v[{X+4*i}:{X+4*i+3}], v2, {WS}, s17 offen", "s_add_u32 s17, s17, 1024")
    a.lab("KL_done"); a("s_endpgm")
    return kdesc(name, 96, 96)

def mish(a, r, b, t):
    a(f"v_add_f32 v{r}, v{r}, v{b}")
    rbf(a, r)
    a(f"v_mul_f32 v{t}, s39, |v{r}|", f"v_exp_f32 v{t}, v{t}")
    a(f"v_cmp_lt_f32 vcc, 0, v{r}", f"v_mul_f32 v{t+1}, v{t}, v{t}")
    a(f"v_cndmask_b32 v{t+2}, v{t+1}, 1.0, vcc", f"v_cndmask_b32 v{t+1}, 1.0, v{t+1}, vcc")
    a(f"v_fma_f32 v{t+2}, 2.0, v{t}, v{t+2}", f"v_fma_f32 v{t+1}, 2.0, v{t+1}, v{t+2}")
    a(f"v_rcp_f32 v{t+1}, v{t+1}", f"v_mul_f32 v{r}, v{r}, v{t+2}", f"v_mul_f32 v{r}, v{r}, v{t+1}")

def gen_ffn1(a, name):
    pro(a, name, 768, "KC", [(40, A_B1)])
    srd(a, 8, 40, 3072)
    W = 72; XF = 40; D = 24; B = 8; T = 16
    seg_part(a, 12, 5462)
    a("s_mul_i32 s30, s17, 40960", "s_mul_i32 s31, s16, 10240", "s_add_u32 s30, s30, s31", f"s_add_u32 s30, s30, {HN}")
    dma(a, 10, "s30", "s31")
    a("s_lshl_b32 s18, s18, 2", "s_add_u32 s18, s18, s16")
    a("v_lshrrev_b32 v5, 4, v1", "v_lshlrev_b32 v5, 3, v5", "s_lshl_b32 s30, s18, 6")
    a(f"buffer_load_dwordx2 v[{T}:{T+1}], v5, s[8:11], s30 offen", f"buffer_load_dwordx2 v[{T+2}:{T+3}], v5, s[8:11], s30 offen offset:32")
    a("s_mul_i32 s30, s18, 40960", f"s_add_u32 s30, s30, {W1F}", "s_add_u32 s31, s30, 20480")
    for ks in range(20):
        for t in range(2): a(f"buffer_load_dwordx4 v[{W+8*ks+4*t}:{W+8*ks+4*t+3}], v2, {WS}, s{30+t} offen offset:{(ks%4)*1024}")
        if ks % 4 == 3: a("s_add_u32 s30, s30, 4096", "s_add_u32 s31, s31, 4096")
    a("s_mov_b32 s39, 0xbfb8aa3b")
    a("s_waitcnt vmcnt(40)", "s_barrier")
    for i in range(4): a(f"v_lshlrev_b32 v{B+2*i}, 16, v{T+i}", f"v_and_b32 v{B+2*i+1}, 0xffff0000, v{T+i}")
    lg = Cnt(a, "lgkmcnt", 15)
    def rd(ks):
        for m in range(2):
            r = XF + 8 * (ks % 4) + 4 * m
            a(f"ds_read_b128 v[{r}:{r+3}], v2 offset:{(m*20+ks)*1024}"); lg.issue(ks)
    for ks in range(3): rd(ks)
    for ks in range(20):
        a(f"s_waitcnt vmcnt({38-2*ks})")
        lg.wait(ks)
        for m in range(2):
            for t in range(2):
                x = XF + 8 * (ks % 4) + 4 * m; d = D + 8 * m + 4 * t; w = W + 8 * ks + 4 * t
                a(f"v_mfma_f32_16x16x32_bf16 v[{d}:{d+3}], v[{w}:{w+3}], v[{x}:{x+3}], " + ("0" if ks == 0 else f"v[{d}:{d+3}]"))
        if ks + 3 < 20: rd(ks + 3)
    a("s_mul_i32 s30, s17, 98304", "s_lshl_b32 s31, s18, 10", "s_add_u32 s30, s30, s31", f"s_add_u32 s30, s30, {ACT}", "s_add_u32 s31, s30, 49152")
    for m in range(2):
        for i in range(4):
            r = D + 8 * m + 2 * i
            a(f"v_cvt_pk_bf16_f32 v{T}, v{r}, v{r+1}", f"v_lshlrev_b32 v{r}, 16, v{T}", f"v_and_b32 v{r+1}, 0xffff0000, v{T}")
            mish(a, r, B + 2 * i, T); mish(a, r + 1, B + 2 * i + 1, T + 4)
            a(f"v_cvt_pk_bf16_f32 v{XF+4*m+i}, v{r}, v{r+1}")
        a(f"buffer_store_dwordx4 v[{XF+4*m}:{XF+4*m+3}], v2, {WS}, s{30+m} offen")
    a.lab("KC_done"); a("s_endpgm")
    return kdesc(name, 232, 232)

def gen_ffn2(a, name):
    pro(a, name, 640, "KD", [(40, A_OUT)])
    srd(a, 8, 40, 2048 * 1280)
    W = 56; XF = 24; D = 16; R = 8; O = 12
    seg_part(a, 10, 6554)
    a("s_mul_i32 s30, s17, 98304", "s_mul_i32 s31, s16, 24576", "s_add_u32 s30, s30, s31", f"s_add_u32 s30, s30, {ACT}")
    dma(a, 24, "s30", "s31")
    a("s_lshl_b32 s18, s18, 2", "s_add_u32 s18, s18, s16")
    half_frag_off(a, 6, 7)
    a("s_mul_i32 s30, s17, 40960", "s_lshl_b32 s31, s18, 9", "s_add_u32 s30, s30, s31", f"s_add_u32 s30, s30, {HB}", "s_add_u32 s31, s30, 20480")
    for m in range(2): a(f"buffer_load_dwordx2 v[{R+2*m}:{R+2*m+1}], v6, {WS}, s{30+m} offen")
    a("s_mul_i32 s30, s18, 49152", f"s_add_u32 s30, s30, {W2F}")
    def wl(lo, hi):
        for i in range(lo, hi):
            a(f"buffer_load_dwordx4 v[{W+4*i}:{W+4*i+3}], v2, {WS}, s30 offen offset:{(i%4)*1024}")
            if i % 4 == 3: a("s_add_u32 s30, s30, 4096")
    wl(0, 32)
    a("s_waitcnt vmcnt(32)", "s_barrier")
    wl(32, 48)
    a("v_mov_b32 v3, v2", "v_add_u32 v4, 0x10000, v2")
    def wwait(ks):
        if ks % 2 == 0: a(f"s_waitcnt vmcnt({46-ks})")
    gemm_tile(a, 48, W, XF, D, 48, wwait)
    row_off(a, 6, 7)
    a("s_mul_i32 s30, s17, 40960", "s_lshl_b32 s31, s18, 5", "s_add_u32 s30, s30, s31", "s_add_u32 s31, s30, 20480")
    for m in range(2):
        resid(a, D + 4 * m, R + 2 * m, O + 2 * m)
        a(f"buffer_store_dwordx2 v[{O+2*m}:{O+2*m+1}], v6, s[8:11], s{30+m} offen")
    a.lab("KD_done"); a("s_endpgm")
    return kdesc(name, 248, 248)
```

```python
from common import *
from mega import dbgt, WS, OPT, z_base, setflag, waitflags, chk, Sched, SPIN
from post import half_frag_off, row_off, resid

def nxt(a, lab):
    a("s_add_u32 s19, s19, s18", "s_cmp_lt_u32 s19, s59", f"s_cbranch_scc1 {lab}")
    dbgt(a, 8 if lab == "PA_seg" else 9, 4)
    a("s_endpgm")

def dma(a, n, soff, lds):
    for i in range(n):
        a(f"s_add_u32 m0, {lds}, {1024*i}", f"buffer_load_dwordx4 v2, {WS}, {soff} offen sc1 lds", f"s_add_u32 {soff}, {soff}, 1024")

def role_a(a, st):
    a.lab("P_a")
    Q = 16; K = 64; M = 112; T = 136; E = 160
    a("s_lshl_b32 s17, s17, 2", "s_add_u32 s17, s17, s16")
    a("v_and_b32 v3, 15, v1", "v_lshrrev_b32 v4, 4, v1", "v_lshlrev_b32 v4, 2, v4", "v_sub_u32 v3, v3, v4")
    for r in range(4): a(f"v_cmp_le_i32 s[{60+2*r}:{61+2*r}], {r}, v3")
    a("s_mov_b32 s38, 0x3d93cd3a", "s_mov_b32 s39, 0x3fb8aa3b", "v_mov_b32 v5, 0xce6e6b28")
    a("v_and_b32 v6, 0xff, v2", "v_and_b32 v7, 16, v1", "v_lshrrev_b32 v7, 1, v7", "v_add_u32 v6, v6, v7")
    a("v_and_b32 v9, 3, v1", "v_lshlrev_b32 v9, 2, v9", "v_mov_b32 v14, 0")
    a.lab("PA_seg")
    a("s_lshl_b32 s40, s19, 5", "s_add_u32 s40, s40, s17")
    a("s_lshl_b32 s30, s40, 4", f"s_add_u32 s30, s30, {KXF}")
    waitflags(a, "s30", 9, 8)
    a("s_mul_i32 s41, s40, 12288", f"s_add_u32 s42, s41, {KX}", f"s_add_u32 s41, s41, {QX}", "s_mul_i32 s43, s40, 6144", f"s_add_u32 s43, s43, {KM}")
    def ld(base, s, n):
        for i in range(n):
            a(f"buffer_load_dwordx4 v[{base+4*i}:{base+4*i+3}], v2, {WS}, s{s} offen offset:{(i%4)*1024} sc1")
            if i % 4 == 3: a(f"s_add_u32 s{s}, s{s}, 4096")
    ld(Q, 41, 12); ld(K, 42, 12)
    a("s_mul_i32 s44, s19, 81920", f"s_add_u32 s44, s44, {PX}", "s_lshl_b32 s45, s17, 10", "s_add_u32 s45, s45, s44")
    a("s_lshl_b32 s46, s17, 8", "s_add_u32 s46, s46, s44", "s_add_u32 s46, s46, 32768")
    a("s_lshl_b32 s47, s40, 7", f"s_add_u32 s30, s47, {KMF}", f"s_add_u32 s47, s47, {PXF}")
    a("s_waitcnt vmcnt(0)")
    def mm(t, A, m, f):
        d = T + 4 * t
        a(f"v_mfma_f32_16x16x32_bf16 v[{d}:{d+3}], v[{A}:{A+3}], v[{Q+4*(6*m+f)}:{Q+4*(6*m+f)+3}], " + ("0" if f == 0 else f"v[{d}:{d+3}]"))
    def rnd(lo, hi):
        for i in range(lo, hi, 2):
            r = T + i
            a(f"v_cvt_pk_bf16_f32 v8, v{r}, v{r+1}", f"v_lshlrev_b32 v{r}, 16, v8", f"v_and_b32 v{r+1}, 0xffff0000, v8")
            a(f"v_mul_f32 v{r}, s38, v{r}", f"v_mul_f32 v{r+1}, s38, v{r+1}")
            a(f"v_cvt_pk_bf16_f32 v8, v{r}, v{r+1}", f"v_lshlrev_b32 v{r}, 16, v8", f"v_and_b32 v{r+1}, 0xffff0000, v8")
    for f in range(6):
        mm(0, K + 4 * f, 0, f); mm(1, K + 4 * f, 1, f); mm(2, K + 24 + 4 * f, 1, f)
    rnd(0, 12)
    for t in (0, 2):
        for r in range(4): a(f"v_cndmask_b32 v{T+4*t+r}, v5, v{T+4*t+r}, s[{60+2*r}:{61+2*r}]")
    waitflags(a, "s30", 14, 8)
    st(0)
    ld(M, 43, 6)
    for f in range(6):
        a(f"s_waitcnt vmcnt({5-f})")
        mm(3, M + 4 * f, 0, f); mm(4, M + 4 * f, 1, f)
    st(2); st(3)
    rnd(12, 20)
    sets = [[T + 4 * t + r for t in tl for r in range(4)] for tl in ((0, 3), (1, 2, 4))]
    MX = [10, 11]; SM = [12, 13]; TT = [176, 177]
    for m, rs in enumerate(sets):
        a(f"v_max3_f32 v{MX[m]}, v{rs[0]}, v{rs[1]}, v{rs[2]}")
        for i in range(3, len(rs) - 1, 2): a(f"v_max3_f32 v{MX[m]}, v{MX[m]}, v{rs[i]}, v{rs[i+1]}")
        a(f"v_max_f32 v{MX[m]}, v{MX[m]}, v{rs[-1]}")
    def xs2(op, V):
        for sw in ("v_permlane16_swap_b32", "v_permlane32_swap_b32"):
            for m in range(2): a(f"v_mov_b32 v{TT[m]}, v{V[m]}")
            for m in range(2): a(f"{sw} v{V[m]}, v{TT[m]}")
            for m in range(2): a(f"{op} v{V[m]}, v{V[m]}, v{TT[m]}")
    xs2("v_max_f32", MX)
    for m, rs in enumerate(sets):
        a(f"v_mul_f32 v{MX[m]}, s39, v{MX[m]}")
        for r in rs: a(f"v_fma_f32 v{r}, v{r}, s39, -v{MX[m]}")
        for r in rs: a(f"v_exp_f32 v{r}, v{r}")
        s_ = SM[m]
        a(f"v_add_f32 v{s_}, v{rs[-4]}, v{rs[-3]}", f"v_add_f32 v{TT[m]}, v{rs[-2]}, v{rs[-1]}", f"v_add_f32 v{s_}, v{s_}, v{TT[m]}", f"v_mul_f32 v{s_}, 0.5, v{s_}")
        for r in rs[:-4]: a(f"v_add_f32 v{s_}, v{s_}, v{r}")
    xs2("v_add_f32", SM)
    for m, rs in enumerate(sets):
        a(f"v_rcp_f32 v{SM[m]}, v{SM[m]}")
        for r in rs: a(f"v_mul_f32 v{r}, v{r}, v{SM[m]}")
        o = E + 8 * m
        a(f"v_cvt_pk_bf16_f32 v{o}, v{rs[0]}, v{rs[1]}", f"v_cvt_pk_bf16_f32 v{o+1}, v{rs[2]}, v{rs[3]}")
        if m == 0: a(f"v_mov_b32 v{o+2}, 0", f"v_mov_b32 v{o+3}, 0")
        else: a(f"v_cvt_pk_bf16_f32 v{o+2}, v{rs[4]}, v{rs[5]}", f"v_cvt_pk_bf16_f32 v{o+3}, v{rs[6]}, v{rs[7]}")
        a(f"v_cvt_pk_bf16_f32 v{o+4}, v{rs[-4]}, v{rs[-3]}", f"v_cvt_pk_bf16_f32 v{o+5}, v{rs[-2]}, v{rs[-1]}")
        a(f"buffer_store_dwordx4 v[{o}:{o+3}], v2, {WS}, s45 offen sc1")
        a("s_mov_b32 exec_hi, 0", f"buffer_store_dwordx2 v[{o+4}:{o+5}], v6, {WS}, s46 offen sc1", "s_mov_b32 exec_hi, -1")
        if m == 0: a("s_add_u32 s45, s45, 40960", "s_add_u32 s46, s46, 40960")
    st(4)
    setflag(a, "s47", 8)
    st(1); st.dump(180, second=True)
    nxt(a, "PA_seg")

def ksum(a, D, ntile, LW_, LR_, T):
    for t in range(4):
        for m in range(2):
            a(f"ds_write_b128 v{LW_}, v[{D+8*t+4*m}:{D+8*t+4*m+3}] offset:{(2*t+m)*4096}")
    a("s_waitcnt lgkmcnt(0)", "s_barrier")
    for m in range(2):
        for w in range(4):
            r = D + 16 * m + 4 * w
            a(f"ds_read_b128 v[{r}:{r+3}], v{LR_} offset:{m*4096+w*1024}")
    a("s_waitcnt lgkmcnt(0)")
    for m in range(2):
        for r in range(4):
            b = D + 16 * m + r
            a(f"v_add_f32 v{b}, v{b}, v{b+4}", f"v_add_f32 v{b+8}, v{b+8}, v{b+12}", f"v_add_f32 v{T+4*m+r}, v{b}, v{b+8}")

def ksum_setup(a, LW_, LR_):
    a("s_lshl_b32 s30, s16, 10", f"v_add_u32 v{LW_}, s30, v2", "s_lshl_b32 s30, s16, 13", f"v_add_u32 v{LR_}, s30, v2")

def role_b(a, st):
    a.lab("P_b")
    a(f"s_load_dwordx2 s[40:41], s[0:1], {A_X}", "s_waitcnt lgkmcnt(0)")
    srd(a, 8, 40, 2048 * 1280)
    PF = 64; ZB = 144; D = 32; T = 16; R = 24; O = 28; LW_ = 10; LR_ = 11
    ksum_setup(a, LW_, LR_)
    a("v_and_b32 v5, 48, v1", "v_lshlrev_b32 v5, 4, v5", "v_and_b32 v6, 15, v1", "v_lshlrev_b32 v6, 2, v6", "v_add_u32 v5, v5, v6")
    row_off(a, 6, 7); half_frag_off(a, 7, 8)
    a("s_lshl_b32 s42, s17, 2", "s_mul_i32 s30, s42, 205", "s_lshr_b32 s30, s30, 11", "s_add_u32 s31, s42, 3", "s_mul_i32 s31, s31, 205", "s_lshr_b32 s31, s31, 11")
    a("s_sub_u32 s31, s31, s30", "s_lshl_b32 s31, s31, 4", "s_lshl_b32 s43, s30, 7", "s_lshl_b32 s30, s16, 5", "s_add_u32 s43, s43, s30", f"s_add_u32 s43, s43, {UF}")
    a("v_and_b32 v9, 7, v1", "v_lshlrev_b32 v9, 2, v9", "v_and_b32 v12, 8, v1", "v_mul_u32_u24 v12, s31, v12", "v_add_u32 v12, v12, v9")
    a("v_lshlrev_b32 v9, 5, v9", "s_lshl_b32 s44, s16, 10", f"s_add_u32 s44, s44, {PXF}")
    a("s_lshl_b32 s45, s42, 15", "s_lshl_b32 s30, s16, 13", "s_add_u32 s45, s45, s30", f"s_add_u32 s45, s45, {U}")
    a("s_lshl_b32 s46, s42, 14", "s_lshl_b32 s30, s16, 11", "s_add_u32 s46, s46, s30")
    a("s_add_u32 s42, s42, s16")
    def uload(seg, S):
        a(f"s_lshl_b32 s30, {seg}, 9", "s_add_u32 s30, s30, s43")
        waitflags(a, "s30", 12, 8)
        a(f"s_mul_i32 s30, {seg}, {40*32768}", "s_add_u32 s30, s30, s45")
        for t in range(4):
            for i in range(8):
                r = 128 * S + 32 * t + 4 * i
                a(f"buffer_load_dwordx4 a[{r}:{r+3}], v2, {WS}, s30 offen offset:{(i%4)*1024} sc1")
                if i == 3: a("s_add_u32 s30, s30, 4096")
            a(f"s_add_u32 s30, s30, {32768-4096}")
    uload("s19", 0)
    a.lab("PB_seg")
    for S in range(2):
        a("s_lshl_b32 s30, s19, 12", "s_add_u32 s30, s30, s44")
        waitflags(a, "s30", 9, 8)
        st(0)
        a("s_mul_i32 s30, s19, 81920", f"s_add_u32 s30, s30, {PX}", "s_lshl_b32 s31, s16, 11", "s_add_u32 s32, s30, s31", "s_add_u32 s32, s32, 32768")
        a("s_lshl_b32 s31, s16, 13", "s_add_u32 s30, s30, s31", "s_add_u32 s31, s30, 40960", "s_add_u32 s33, s32, 40960")
        for i in range(8):
            for m in range(2):
                r = PF + 8 * i + 4 * m
                a(f"buffer_load_dwordx4 v[{r}:{r+3}], v2, {WS}, s{30+m} offen offset:{(i%4)*1024} sc1")
            if i == 3: a("s_add_u32 s30, s30, 4096", "s_add_u32 s31, s31, 4096")
        for i in range(2):
            for m in range(2):
                r = PF + 64 + 8 * i + 4 * m
                a(f"buffer_load_dwordx4 v[{r}:{r+3}], v2, {WS}, s{32+m} offen offset:{i*1024} sc1")
        a("s_mul_i32 s30, s19, 40960", "s_lshl_b32 s31, s42, 5", "s_add_u32 s30, s30, s31", "s_add_u32 s31, s30, 20480")
        for m in range(2): a(f"buffer_load_dwordx2 v[{R+2*m}:{R+2*m+1}], v6, s[8:11], s{30+m} offen")
        z_base(a, "s26", "s19"); a("s_add_u32 s26, s26, s46", "s_mov_b32 s35, 0")
        def zload():
            a("s_mov_b32 s27, s26")
            for t in range(4):
                for i in range(8): a(f"buffer_load_dword v{ZB+8*t+i}, v5, {WS}, s27 offen offset:{(i//4)*1024+(i%4)*64} sc1")
                a("s_add_u32 s27, s27, 16384")
        zload()
        for i in range(8):
            a(f"s_waitcnt vmcnt({52-2*i})")
            for t in range(4):
                for m in range(2):
                    d = D + 8 * t + 4 * m; u = 128 * S + 32 * t + 4 * i; p = PF + 8 * i + 4 * m
                    a(f"v_mfma_f32_16x16x32_bf16 v[{d}:{d+3}], a[{u}:{u+3}], v[{p}:{p+3}], " + ("0" if i == 0 else f"v[{d}:{d+3}]"))
        st(2)
        a.lab(f"PB_z{S}")
        a("s_waitcnt vmcnt(0)")
        chk(a, range(ZB, ZB + 32), 176)
        a(f"s_cbranch_vccz PB_zok{S}")
        zload()
        a("s_add_u32 s35, s35, 1", f"s_cmp_lt_u32 s35, {SPIN}", f"s_cbranch_scc1 PB_z{S}", "s_branch M_fail")
        a.lab(f"PB_zok{S}")
        for i in range(2):
            for t in range(4):
                for m in range(2):
                    d = D + 8 * t + 4 * m; z = ZB + 8 * t + 4 * i; p = PF + 64 + 8 * i + 4 * m
                    a(f"v_mfma_f32_16x16x32_bf16 v[{d}:{d+3}], v[{z}:{z+3}], v[{p}:{p+3}], v[{d}:{d+3}]")
        st(3)
        if OPT.get('bpf', 1):
            a("s_add_u32 s34, s19, s18", "s_cmp_ge_u32 s34, s59", f"s_cbranch_scc1 PB_nopf{S}")
            uload("s34", 1 - S)
            a.lab(f"PB_nopf{S}")
        ksum(a, D, 4, LW_, LR_, T)
        a("s_mul_i32 s30, s19, 40960", "s_lshl_b32 s31, s42, 9", "s_add_u32 s30, s30, s31", f"s_add_u32 s30, s30, {HB}", "s_add_u32 s31, s30, 20480")
        for m in range(2):
            resid(a, T + 4 * m, R + 2 * m, O + 2 * m)
            a(f"buffer_store_dwordx2 v[{O+2*m}:{O+2*m+1}], v7, {WS}, s{30+m} offen sc1")
        st(4)
        a(f"v_xor_b32 v{LW_}, 0x8000, v{LW_}", f"v_xor_b32 v{LR_}, 0x8000, v{LR_}")
        a("s_lshl_b32 s30, s19, 13", "s_lshl_b32 s31, s42, 7", "s_add_u32 s30, s30, s31", f"s_add_u32 s30, s30, {HFL}")
        setflag(a, "s30", 8)
        st(1); st.dump(180, second=True)
        a("s_add_u32 s19, s19, s18", "s_cmp_ge_u32 s19, s59", "s_cbranch_scc1 M_done")
        if not OPT.get('bpf', 1): uload("s19", 1 - S)
    a("s_branch PB_seg")

def role_c(a, st):
    a.lab("P_c")
    a("v_lshlrev_b32 v4, 7, v1", f"s_mov_b32 s30, {WTF}")
    waitflags(a, "s30", 4, 8)
    a(f"s_load_dwordx2 s[40:41], s[0:1], {A_B1}", "s_waitcnt lgkmcnt(0)")
    srd(a, 8, 40, 3072)
    XF = 64; D = 48; B = 16; CS = 24; T = 32; S1 = 40; O = 96; G = 120; XA = 44; FA = 4; SA = 5; SR = 6; FV = 7; ONES = 12
    LST = 49152
    a("s_lshl_b32 s17, s17, 2", "s_add_u32 s17, s17, s16")
    a("v_lshrrev_b32 v7, 4, v1", "v_lshlrev_b32 v7, 3, v7", "s_lshl_b32 s30, s17, 6")
    a(f"buffer_load_dwordx2 v[{T}:{T+1}], v7, s[8:11], s30 offen", f"buffer_load_dwordx2 v[{T+2}:{T+3}], v7, s[8:11], s30 offen offset:32")
    a("s_mul_i32 s32, s17, 40960", f"s_add_u32 s32, s32, {W1F}")
    for q in range(4):
        a(f"s_add_u32 s{60+q}, s16, {q}", f"s_and_b32 s{60+q}, s{60+q}, 3", f"s_mul_i32 s{60+q}, s{60+q}, 5120")
        a(f"s_add_u32 s30, s32, s{60+q}", "s_add_u32 s31, s30, 20480")
        for i in range(5):
            ks = 5 * q + i
            if i == 4: a("s_add_u32 s30, s30, 4096", "s_add_u32 s31, s31, 4096")
            for t in range(2): a(f"buffer_load_dwordx4 a[{8*ks+4*t}:{8*ks+4*t+3}], v2, {WS}, s{30+t} offen offset:{(i%4)*1024} sc1")
        a(f"v_add_u32 v{XA+q}, s{60+q}, v2")
    a("s_mov_b32 s39, 0x3fb8aa3b", "s_mov_b32 s38, 0x422c0000", "s_mul_i32 s26, s16, 10240", "s_mov_b32 s47, 0x7ffffff0")
    for i in range(4): a(f"v_mov_b32 v{ONES+i}, 0x3f803f80")
    a(f"v_min_u32 v{FA}, 39, v1", f"v_lshlrev_b32 v{FA}, 7, v{FA}")
    a(f"v_and_b32 v{SR}, 0xff, v2", f"v_add_u32 v{SR}, {LST}, v{SR}", "s_lshl_b32 s30, s16, 8", f"v_add_u32 v{SA}, s30, v{SR}")
    a("s_mov_b32 s64, 0xaaaaaaaa", "s_mov_b32 s65, 0xaaaaaaaa", "s_mov_b32 s66, 0xcccccccc", "s_mov_b32 s67, 0xcccccccc")
    a("s_mov_b32 s68, 0x00f0000f", "s_mov_b32 s69, 0xf0000f00")
    a("s_waitcnt vmcnt(0)")
    for i in range(4): a(f"v_lshlrev_b32 v{B+2*i}, 16, v{T+i}", f"v_and_b32 v{B+2*i+1}, 0xffff0000, v{T+i}")
    for ks in range(20):
        for t in range(2):
            d = CS + 4 * t
            a(f"v_mfma_f32_16x16x32_bf16 v[{d}:{d+3}], a[{8*ks+4*t}:{8*ks+4*t+3}], v[{ONES}:{ONES+3}], " + ("0" if ks == 0 else f"v[{d}:{d+3}]"))
    def fetch(seg):
        a(f"s_mul_i32 s30, {seg}, 40960", "s_mul_i32 s31, s16, 10240", "s_add_u32 s30, s30, s31", f"s_add_u32 s30, s30, {HB}")
        dma(a, 10, "s30", "s26")
    lg = Cnt(a, "lgkmcnt", 15)
    a.lab("PC_seg")
    setflag(a, "s47", 8)
    a("s_mov_b32 s47, 0x7ffffff0")
    a("s_lshl_b32 s30, s19, 13", f"s_add_u32 s30, s30, {HFL}")
    waitflags(a, "s30", FA, 8)
    st(0)
    fetch("s19")
    a("s_waitcnt vmcnt(0)")
    a.lab("PC_have")
    a("s_waitcnt vmcnt(2)", "s_barrier")
    st(2)
    def rd(ks):
        return [(f"ds_read_b128 v[{XF+8*(ks%4)+4*m}:{XF+8*(ks%4)+4*m+3}], v{XA+ks//5} offset:{(m*20+ks%5)*1024}", ks) for m in range(2)]
    for x in rd(0) + rd(1) + rd(2): a(x[0]); lg.issue(x[1])
    a("s_add_u32 s34, s19, s18", "s_min_u32 s30, s34, 63", "s_lshl_b32 s30, s30, 13", f"s_add_u32 s46, s30, {HFL}")
    sc = Sched(a, lg)
    for ks in range(20):
        n0 = len(sc.mm)
        for m in range(2):
            x = XF + 8 * (ks % 4) + 4 * m
            for t in range(2):
                d = D + 8 * m + 4 * t
                sc.add(f"v_mfma_f32_16x16x32_bf16 v[{d}:{d+3}], a[{8*ks+4*t}:{8*ks+4*t+3}], v[{x}:{x+3}], " + ("0" if ks == 0 else f"v[{d}:{d+3}]"), [ks])
            if ks < 5:
                for t, A in enumerate((ONES, x)):
                    d = G + 8 * m + 4 * t
                    sc.add(f"v_mfma_f32_16x16x32_bf16 v[{d}:{d+3}], v[{A}:{A+3}], v[{x}:{x+3}], " + ("0" if ks == 0 else f"v[{d}:{d+3}]"), [ks])
        if ks + 3 < 20:
            for k, x in enumerate(rd(ks + 3)): sc.fill(n0 + k, *x)
    n = 48
    for m in range(2):
        g = G + 8 * m + 4
        for x in (f"v_cndmask_b32 v{g}, v{g}, v{g+1}, s[64:65]", f"v_cndmask_b32 v{g+2}, v{g+2}, v{g+3}, s[64:65]",
                  f"v_cndmask_b32 v{S1+2*m+1}, v{g}, v{g+2}, s[66:67]", f"v_mov_b32 v{S1+2*m}, v{G+8*m}"):
            sc.fill(n, x); n += 1
    sc.fill(58, "s_mov_b64 exec, s[68:69]"); sc.fill(58, f"ds_write_b128 v{SA}, v[{S1}:{S1+3}]", 'sw'); sc.fill(58, "s_mov_b64 exec, -1")
    sc.fill(66, "s_barrier", None, ['sw'])
    for w in range(4): sc.fill(66 + 4 * (w // 2) + w % 2, f"ds_read_b128 v[{O+4*w}:{O+4*w+3}], v{SR} offset:{256*w}", 'sr')
    sc.fill(30, "s_waitcnt vmcnt(0)"); sc.fill(31, "s_mov_b64 exec, 1"); sc.fill(31, f"buffer_store_dword v{ONES}, v2, {WS}, s47 offen sc1"); sc.fill(31, "s_mov_b64 exec, -1")
    sc.fill(62, f"buffer_load_dword v{FV}, v{FA}, {WS}, s46 offen sc1")
    stat = []
    for i in range(4):
        stat += [f"v_add_f32 v{O+i}, v{O+i}, v{O+4+i}", f"v_add_f32 v{O+8+i}, v{O+8+i}, v{O+12+i}", f"v_add_f32 v{S1+i}, v{O+i}, v{O+8+i}", f"v_mul_f32 v{S1+i}, 0x3acccccd, v{S1+i}"]
    rb = lambda v: [f"v_cvt_pk_bf16_f32 v{v}, v{v}, v{v}", f"v_and_b32 v{v}, 0xffff0000, v{v}"]
    per = []
    for m in range(2):
        mu, va = S1 + 2 * m, S1 + 2 * m + 1
        per.append([f"v_fma_f32 v{va}, -v{mu}, v{mu}, v{va}", f"v_max_f32 v{va}, 0, v{va}"] + rb(mu) + rb(va) + [f"v_add_f32 v{va}, 0x3727c5ac, v{va}"] + rb(va) +
                   [f"v_sqrt_f32 v{va}, v{va}"] + rb(va) + [f"v_rcp_f32 v{va}, v{va}", f"v_mul_f32 v{mu}, v{mu}, v{va}"])
    for x, y in zip(*per): stat += [x, y]
    for k, x in enumerate(stat): sc.fill(78 + k // 2, x, None, ['sr'] if k == 0 else ())
    sc.emit()
    st(3)
    a("s_xor_b32 s27, s26, s26", "s_waitcnt vmcnt(0)", f"v_cmp_eq_u32 vcc, 0, v{FV}")
    for q in range(4): a(f"v_xor_b32 v{XA+q}, 0x10000, v{XA+q}")
    a("s_xor_b32 s26, s26, 0x10000")
    a("s_cbranch_vccnz PC_nopf", "s_cmp_ge_u32 s34, s59", "s_cbranch_scc1 PC_nopf")
    fetch("s34")
    a("s_mov_b32 s27, 1")
    a.lab("PC_nopf")
    a("s_mul_i32 s30, s19, 98304", "s_lshl_b32 s31, s17, 10", "s_add_u32 s30, s30, s31", f"s_add_u32 s30, s30, {ACT}", "s_add_u32 s31, s30, 49152")
    for m in range(2):
        mu, rs = S1 + 2 * m, S1 + 2 * m + 1
        R = [D + 8 * m + i for i in range(8)]
        N = O; P = O + 8; Dn = O + 16
        for i in range(8): a(f"v_fma_f32 v{N+i}, -v{mu}, v{CS+i}, v{B+i}")
        for i, r in enumerate(R): a(f"v_fma_f32 v{r}, v{r}, v{rs}, v{N+i}")
        for i, r in enumerate(R): a(f"v_mul_f32 v{N+i}, s39, v{r}")
        for i in range(8): a(f"v_min_f32 v{N+i}, s38, v{N+i}")
        for i in range(8): a(f"v_exp_f32 v{N+i}, v{N+i}")
        for i in range(8): a(f"v_add_f32 v{P+i}, 2.0, v{N+i}")
        for i in range(8): a(f"v_fma_f32 v{Dn+i}, v{N+i}, v{P+i}, 2.0")
        for i in range(8): a(f"v_rcp_f32 v{Dn+i}, v{Dn+i}")
        for i in range(8): a(f"v_mul_f32 v{N+i}, v{N+i}, v{P+i}")
        for i in range(8): a(f"v_mul_f32 v{N+i}, v{N+i}, v{Dn+i}")
        for i, r in enumerate(R): a(f"v_mul_f32 v{r}, v{r}, v{N+i}")
        o = T + 4 * m
        for i in range(4): a(f"v_cvt_pk_bf16_f32 v{o+i}, v{R[2*i]}, v{R[2*i+1]}")
        a(f"buffer_store_dwordx4 v[{o}:{o+3}], v2, {WS}, s{30+m} offen sc1")
    st(4)
    a("s_lshl_b32 s30, s19, 13", "s_lshl_b32 s31, s17, 7", "s_add_u32 s30, s30, s31", f"s_add_u32 s47, s30, {AFL}")
    st(1); st.dump(180, second=True)
    a("s_mov_b32 s19, s34")
    st(0)
    a("s_cmp_lg_u32 s27, 0", "s_cbranch_scc1 PC_have")
    a("s_cmp_lt_u32 s19, s59", "s_cbranch_scc1 PC_seg")
    setflag(a, "s47", 8)
    a("s_endpgm")

def role_d(a, st):
    a.lab("P_d")
    a("v_lshlrev_b32 v4, 7, v1", f"s_mov_b32 s30, {WTF}")
    waitflags(a, "s30", 4, 8)
    a(f"s_load_dwordx2 s[40:41], s[0:1], {A_OUT}", "s_waitcnt lgkmcnt(0)")
    srd(a, 8, 40, 2048 * 1280)
    XF = 64; D = 32; T = 16; R = 24; O = 28; LW_ = 10; LR_ = 11; FA = 9
    ksum_setup(a, LW_, LR_)
    row_off(a, 6, 7); half_frag_off(a, 7, 8)
    a("s_lshl_b32 s42, s17, 2", "s_mul_i32 s30, s42, 49152", "s_mul_i32 s43, s16, 12288", "s_add_u32 s30, s30, s43", f"s_add_u32 s30, s30, {W2F}")
    for t in range(4):
        for i in range(12):
            r = 48 * t + 4 * i
            a(f"buffer_load_dwordx4 a[{r}:{r+3}], v2, {WS}, s30 offen offset:{(i%4)*1024} sc1")
            if i % 4 == 3: a("s_add_u32 s30, s30, 4096")
        a(f"s_add_u32 s30, s30, {49152-12288}")
    a("s_add_u32 s42, s42, s16")
    a(f"v_min_u32 v{FA}, 11, v1", f"v_lshlrev_b32 v{FA}, 7, v{FA}", "s_mul_i32 s44, s16, 1536", f"s_add_u32 s44, s44, {AFL}")
    a.lab("PD_seg")
    a("s_lshl_b32 s30, s19, 13", "s_add_u32 s30, s30, s44")
    waitflags(a, "s30", FA, 8)
    st(0)
    a("s_mul_i32 s30, s19, 98304", "s_add_u32 s30, s30, s43", f"s_add_u32 s30, s30, {ACT}", "s_add_u32 s31, s30, 49152")
    for i in range(12):
        for m in range(2):
            r = XF + 8 * i + 4 * m
            a(f"buffer_load_dwordx4 v[{r}:{r+3}], v2, {WS}, s{30+m} offen offset:{(i%4)*1024} sc1")
        if i % 4 == 3: a("s_add_u32 s30, s30, 4096", "s_add_u32 s31, s31, 4096")
    a("s_mul_i32 s32, s19, 40960", "s_lshl_b32 s31, s42, 9", "s_add_u32 s30, s32, s31", f"s_add_u32 s30, s30, {HB}", "s_add_u32 s31, s30, 20480")
    for m in range(2): a(f"buffer_load_dwordx2 v[{R+2*m}:{R+2*m+1}], v7, {WS}, s{30+m} offen sc1")
    for i in range(12):
        a(f"s_waitcnt vmcnt({24-2*i})")
        for t in range(4):
            for m in range(2):
                d = D + 8 * t + 4 * m; w = 48 * t + 4 * i; x = XF + 8 * i + 4 * m
                a(f"v_mfma_f32_16x16x32_bf16 v[{d}:{d+3}], a[{w}:{w+3}], v[{x}:{x+3}], " + ("0" if i == 0 else f"v[{d}:{d+3}]"))
    st(2); st(3); st(4)
    ksum(a, D, 4, LW_, LR_, T)
    a("s_lshl_b32 s31, s42, 5", "s_add_u32 s30, s32, s31", "s_add_u32 s31, s30, 20480", "s_waitcnt vmcnt(0)")
    for m in range(2):
        resid(a, T + 4 * m, R + 2 * m, O + 2 * m)
        a(f"buffer_store_dwordx2 v[{O+2*m}:{O+2*m+1}], v6, s[8:11], s{30+m} offen")
    a(f"v_xor_b32 v{LW_}, 0x8000, v{LW_}", f"v_xor_b32 v{LR_}, 0x8000, v{LR_}")
    st(1); st.dump(180, second=True)
    nxt(a, "PD_seg")
```

```python
import sys
from common import *
import k0, mega, post
HEAD = open("head.txt").read()
def build(stamps=False):
    a = Asm()
    L = [("k0_kernel", 256, 17408, k0.gen_k0), ("mega_kernel", 256, 163840, lambda a, n: mega.gen_mega(a, n, stamps)),
         ("att_kernel", 512, 0, post.gen_att), ("pz_kernel", 640, 81920, post.gen_pz), ("ln2_kernel", 128, 512, post.gen_ln2),
         ("ffn1_kernel", 768, 40960, post.gen_ffn1), ("ffn2_kernel", 640, 98304, post.gen_ffn2)]
    L = L[1:2]
    a.raw(HEAD.rstrip())
    for n, g, l, f in L: a.raw(f"; @launch kernel={n} grid=({g},1,1) block=(256,1,1) lds={l}")
    a.raw('.amdgcn_target "amdgcn-amd-amdhsa--gfx950"\n.text')
    d = ""
    for n, g, l, f in L: d += ".p2align 6\n" + f(a, n)
    a.raw('.section .rodata,"a"\n' + d)
    return a.text()
if __name__ == "__main__":
    out = "cur.s"
    for x in sys.argv[1:]:
        if x.startswith("o="): out = x[2:]
        elif "=" in x: k, v = x.split("="); mega.OPT[k] = int(v)
    open(out, "w").write(build(stamps=("st" in sys.argv)))
```

```python
from common import *
from k0 import ln_core
WS = "s[4:7]"

KORD = [2 * s + h for sgs in ((0, 2, 4, 6), (1, 3, 5, 7), (8, 9)) for h in range(2) for s in sgs]

def prefetch(a, lo, hi, pace, L="I"):
    a("s_and_b32 s30, s60, 31", "s_lshl_b32 s30, s30, 1", "s_lshr_b32 s31, s16, 1", "s_add_u32 s30, s30, s31")
    a("s_mov_b32 exec_hi, 0xffff", "s_mul_i32 s30, s30, 48", "v_add_u32 v90, s30, v1", "v_lshlrev_b32 v91, 7, v90")
    a("s_bitcmp1_b32 s16, 0", f"s_cbranch_scc1 {L}_pf3")
    srd(a, 72, 40, 640 * 12288); srd(a, 76, 42, 640 * 12288)
    def rows(srdn, ks): a(f"s_mov_b32 s30, {ks*393216}", f"buffer_load_dword v95, v91, {srdn}, s30 offen")
    for r in range(lo, hi):
        a(f"s_waitcnt vmcnt({pace})")
        for h in range(2): rows("s[72:75]", KORD[2 * r + h]); rows("s[76:79]", KORD[2 * r + h])
    a(f"s_branch {L}_pf9")
    a.lab(f"{L}_pf3")
    srd(a, 72, 44, 640 * 12288); srd(a, 76, 46, 6144 * 1280)
    a("s_mov_b32 s31, 52429")
    for r in range(lo, hi):
        a(f"s_waitcnt vmcnt({pace})")
        for h in range(4):
            if r < 5: rows("s[72:75]", KORD[4 * r + h]); continue
            a(f"v_add_u32 v94, {(r-5)*12288+h*3072}, v90", "v_lshrrev_b32 v92, 6, v94", "v_mul_u32_u24 v92, s31, v92", "v_lshrrev_b32 v92, 18, v92")
            a("v_mul_u32_u24 v93, 320, v92", "v_sub_u32 v94, v94, v93", "v_lshlrev_b32 v94, 7, v94")
            a("v_and_b32 v93, 31, v92", "v_mul_u32_u24 v93, 245760, v93", "v_lshrrev_b32 v92, 5, v92", "v_mul_u32_u24 v92, 40960, v92", "v_add3_u32 v94, v94, v92, v93")
            a("buffer_load_dword v95, v94, s[76:79], 0 offen")
    a.lab(f"{L}_pf9")
    a("s_mov_b32 exec_hi, -1")
for L_ in range(61440): assert (((L_ >> 6) * 52429) >> 18) == L_ // 320

def gen_init(a, nwt, OPT, waitflags):
    a.lab("I_start")
    a(f"s_load_dwordx4 s[64:67], s[0:1], {A_X}", f"s_load_dwordx2 s[68:69], s[0:1], {A_W1}", f"s_load_dwordx2 s[70:71], s[0:1], {A_W2}")
    a("v_lshlrev_b32 v3, 4, v0")
    for i in range(4): a(f"v_mov_b32 v{16+i}, -1", f"v_mov_b32 v{80+i}, 0")
    a("s_waitcnt lgkmcnt(0)")
    srd(a, 8, 64, 2048 * 1280); srd(a, 12, 66, 8 * 1280)
    a("s_lshl_b32 s62, s60, 7", f"s_add_u32 s62, s62, {WTF}")
    a("s_cmp_ge_u32 s60, 32", "s_cbranch_scc1 I_pf")
    a("s_lshl_b32 s61, s60, 2", "s_add_u32 s61, s61, s16")
    a("s_cmp_lg_u32 s16, 1", "s_cbranch_scc1 I_ln", f"s_cmp_ge_u32 s60, {NBLK}", "s_cbranch_scc1 I_ln")
    a("s_lshl_b32 s30, s60, 21", f"s_add_u32 s30, s30, {2*MB-16384+6144}", "s_add_u32 s31, s30, 8192")
    a("s_mov_b64 exec, 0xff", "s_mov_b32 s32, -1", "s_mov_b32 s33, -1", "s_mov_b32 s34, 0")
    a.lab("I_probe")
    for h in range(2):
        a("s_memtime s[72:73]", "s_waitcnt lgkmcnt(0)")
        a(f"buffer_store_dwordx4 v[16:19], v2, {WS}, s{30+h} offen sc1", "s_waitcnt vmcnt(0)")
        a("s_memtime s[74:75]", "s_waitcnt lgkmcnt(0)")
        a("s_sub_u32 s74, s74, s72", f"s_min_u32 s{32+h}, s{32+h}, s74")
    a("s_add_u32 s34, s34, 1", f"s_cmp_lt_u32 s34, {OPT.get('nprobe', 3)}", "s_cbranch_scc1 I_probe")
    a("s_cmp_lt_u32 s33, s32", "s_cselect_b32 s34, 1, 0", "v_mov_b32 v20, s34", "s_lshl_b32 s30, s60, 2", f"s_add_u32 s30, s30, {PAR}")
    a("s_mov_b64 exec, 1", f"buffer_store_dword v20, v2, {WS}, s30 offen sc1")
    if OPT.get('dbgt'):
        a("s_lshl_b32 s34, s34, s60", "v_mov_b32 v21, s34", "v_mov_b32 v22, 0", "global_atomic_or v22, v21, s[48:49] offset:40 sc1")
    a("s_mov_b64 exec, -1")
    a.lab("I_ln")
    a("s_barrier")
    X = 176; F = 16; T = 8
    a("v_and_b32 v4, 15, v1", "s_lshl_b32 s30, s61, 4", "v_add_u32 v5, s30, v4", "v_mul_u32_u24 v5, 1280, v5")
    a("v_and_b32 v6, 48, v1", "v_add_u32 v5, v5, v6")
    for i in range(20):
        a(f"buffer_load_dwordx4 v[{X+4*i}:{X+4*i+3}], v5, s[8:11], 0 offen offset:{64*i}")
    a("s_mul_i32 s30, s61, 5120", f"s_add_u32 s30, s30, {ZM}")
    for i in range(5): a(f"buffer_store_dwordx4 v[16:19], v2, {WS}, s30 offen sc1", "s_add_u32 s30, s30, 1024")
    a("s_lshl_b32 s30, s61, 10", f"buffer_store_dwordx4 v[16:19], v2, {WS}, s30 offen sc1")
    a("s_lshl_b32 s31, s61, 10")
    nm = 0
    for base, per in ((KM, 192), (PX, 80), (HB, 40), (ACT, 96)):
        for c0 in range(0, per * (64 - E0), 128):
            n = min(128, per * (64 - E0) - c0); nm += 1
            a(f"s_add_u32 s30, s31, {base+(E0*per+c0)*1024}")
            if n < 128: a(f"s_cmp_lt_u32 s61, {n}", "s_cselect_b32 s30, s30, 0x7ffffff0")
            a(f"buffer_store_dwordx4 v[16:19], v2, {WS}, s30 offen sc1")
    a("v_lshlrev_b32 v14, 7, v1", f"s_mul_i32 s30, s61, {FL2_BYTES//128}", f"s_add_u32 s30, s30, {FL2}", f"buffer_store_dword v80, v14, {WS}, s30 offen sc1")
    a("s_add_u32 s30, s30, 4096", f"buffer_store_dword v80, v14, {WS}, s30 offen sc1")
    per = (FLG_ZERO_HI - FLG_ZERO_LO) // 128
    assert per == 46 * 16
    a(f"s_mul_i32 s30, s61, {per}", f"s_add_u32 s30, s30, {FLG_ZERO_LO}", "s_mov_b32 exec_hi, 0x3fff", f"buffer_store_dwordx4 v[80:83], v2, {WS}, s30 offen sc1")
    a("s_lshl_b32 s30, s61, 8", f"s_add_u32 s30, s30, {HUQ}", "s_mov_b64 exec, 3", f"buffer_store_dword v80, v14, {WS}, s30 offen sc1")
    a("s_lshr_b32 s30, s61, 1", "s_lshl_b32 s30, s30, 7", f"s_add_u32 s30, s30, {WTF}")
    a("s_mov_b64 exec, 1", f"buffer_store_dword v80, v14, {WS}, s30 offen sc1", "s_mov_b64 exec, -1")
    a("s_sub_u32 s30, s61, 64", "s_cmp_ge_u32 s30, 10", "s_cbranch_scc1 I_nomem")
    a("v_and_b32 v4, 12, v1", "v_lshrrev_b32 v4, 1, v4", "v_and_b32 v5, 1, v1", "v_add_u32 v4, v4, v5", "v_mul_u32_u24 v4, 1280, v4")
    a("v_and_b32 v5, 48, v1", "v_lshlrev_b32 v5, 1, v5", "v_add_u32 v4, v4, v5")
    a("v_and_b32 v5, 2, v1", "v_lshlrev_b32 v5, 1, v5", "v_add_u32 v4, v4, v5", "s_lshl_b32 s31, s30, 7")
    for i in range(4): a(f"buffer_load_dword v{84+i}, v4, s[12:15], s31 offen offset:{8*i}")
    a("s_add_u32 s30, s30, 20", "s_lshr_b32 s31, s30, 3", "s_lshl_b32 s31, s31, 14", "s_and_b32 s30, s30, 7", "s_lshl_b32 s30, s30, 10")
    a("s_add_u32 s30, s30, s31", f"s_add_u32 s30, s30, {M0B}", "s_waitcnt vmcnt(0)")
    for i in range(4): a(f"v_min_u32 v{84+i}, -2, v{84+i}")
    a(f"buffer_store_dwordx4 v[84:87], v2, {WS}, s30 offen sc1")
    a.lab("I_nomem")
    a(f"s_waitcnt vmcnt({11+nm})")
    ln_core(a, X, F, T, None, 20)
    a("s_mul_i32 s30, s61, 20480", f"s_add_u32 s30, s30, {XN}")
    for i in range(20):
        a(f"buffer_store_dwordx4 v[{X+4*i}:{X+4*i+3}], v2, {WS}, s30 offen offset:{(i%4)*1024} sc1")
        if i % 4 == 3: a("s_add_u32 s30, s30, 4096")
    a("s_waitcnt vmcnt(0)", "s_barrier")
    claim(a, "I_cl1")
    a.lab("I_cl1")
    prefetch(a, OPT.get('pfm', 8), 10, OPT.get('pace', 8), "J")
    a("s_branch I_claimed")
    a.lab("I_pf")
    claim(a, "I_pf1")
    a.lab("I_pf1")
    if OPT.get('pf', 1): prefetch(a, OPT.get('pfs', 3), OPT.get('pfm', 8), OPT.get('pace', 8))
    a.lab("I_claimed")
    wait_init(a, 200000, 4)
    a(f"s_cmp_lt_u32 s60, 40", "s_cbranch_scc1 M_roles")
    a("v_mov_b32 v4, 0", "s_lshl_b32 s30, s60, 4", f"s_add_u32 s30, s30, {KXF-640+512*OPT.get('wts', 0)}")
    waitflags(a, "s30", 4, 8)
    a("s_sub_u32 s61, s60, 40", "s_mul_i32 s61, s61, 40", "s_mul_i32 s30, s16, 10", "s_add_u32 s61, s61, s30", "s_mov_b32 s37, 0")
    a("s_cmp_ge_u32 s60, 52", "s_cbranch_scc1 I_wt2")
    srd(a, 8, 68, 640 * 3072)
    a("s_movk_i32 s24, 2731", "s_movk_i32 s25, 24", "s_movk_i32 s26, 3072", "s_movk_i32 s27, 20480", f"s_mov_b32 s28, {W1F}")
    a("v_lshrrev_b32 v4, 4, v1", "v_lshlrev_b32 v4, 10, v4", "v_and_b32 v5, 12, v1", "v_lshlrev_b32 v5, 5, v5", "v_add_u32 v4, v4, v5", "s_movk_i32 s29, 512")
    a("s_branch I_wt3")
    a.lab("I_wt2")
    srd(a, 8, 70, 1536 * 1280)
    a("s_sub_u32 s61, s61, 480", "s_movk_i32 s24, 6554", "s_movk_i32 s25, 10", "s_movk_i32 s26, 1280", "s_mov_b32 s27, 49152", f"s_mov_b32 s28, {W2F}")
    a("v_lshrrev_b32 v4, 2, v1", "v_lshlrev_b32 v4, 7, v4", "s_movk_i32 s29, 2048")
    a.lab("I_wt3")
    a("v_and_b32 v5, 3, v1", "v_lshlrev_b32 v5, 3, v5", "s_mul_i32 s30, s16, 20480", "s_add_u32 s30, s30, 1024", "v_add3_u32 v4, v4, v5, s30", "v_add_u32 v5, s29, v4")
    a("v_lshrrev_b32 v6, 3, v1", "v_mul_lo_u32 v6, v6, s26", "v_and_b32 v7, 7, v1", "v_lshlrev_b32 v7, 4, v7", "v_add_u32 v6, v6, v7")
    a("s_lshl_b32 s33, s26, 3")
    a.lab("I_wt4")
    for b in range(5):
        a(f"s_add_u32 s34, s61, {b}", "s_mul_i32 s35, s34, s24", "s_lshr_b32 s35, s35, 16", "s_mul_i32 s36, s35, s25", "s_sub_u32 s36, s34, s36")
        a("s_lshl_b32 s31, s26, 5", "s_mul_i32 s31, s31, s35", "s_lshl_b32 s32, s36, 7", "s_add_u32 s31, s31, s32")
        for i in range(4):
            a(f"s_add_u32 m0, s30, {4096*b+1024*i}", "buffer_load_dwordx4 v6, s[8:11], s31 offen lds", "s_add_u32 s31, s31, s33")
        a("s_lshl_b32 s36, s36, 2", "s_mul_i32 s36, s36, s27", "s_lshl_b32 s35, s35, 10", "s_add_u32 s36, s36, s35", f"s_add_u32 s{72+b}, s36, s28")
    a("s_waitcnt vmcnt(0)")
    for b in range(5):
        for t in range(4):
            r = 24 + 16 * b + 4 * t
            a(f"ds_read_b64_tr_b16 v[{r}:{r+1}], v4 offset:{4096*b+32*t}", f"ds_read_b64_tr_b16 v[{r+2}:{r+3}], v5 offset:{4096*b+32*t}")
        a("s_waitcnt lgkmcnt(0)")
        for t in range(4):
            r = 24 + 16 * b + 4 * t
            a(f"buffer_store_dwordx4 v[{r}:{r+3}], v2, {WS}, s{72+b} offen sc1", f"s_add_u32 s{72+b}, s{72+b}, s27")
    a("s_add_u32 s61, s61, 5", "s_add_u32 s37, s37, 1", "s_cmp_lt_u32 s37, 2", "s_cbranch_scc1 I_wt4")
    a("s_waitcnt vmcnt(0)", "s_barrier")
    a("s_cmp_lg_u32 s16, 0", "s_cbranch_scc1 M_roles", "v_mov_b32 v4, 1")
    a("s_mov_b64 exec, 1", f"buffer_store_dword v4, v2, {WS}, s62 offen sc1", "s_mov_b64 exec, -1")
    a("s_branch M_roles")

def claim(a, skip):
    if skip: a("s_cmp_lg_u32 s16, 0", f"s_cbranch_scc1 {skip}")
    a("s_lshr_b32 s30, s3, 5", "s_lshl_b32 s30, s30, 3", "s_add_u32 s30, s30, s63", "s_lshl_b32 s31, 1, s3")
    a("v_mov_b32 v3, s30", "v_mov_b32 v4, s31", "v_mov_b32 v5, 0x100")
    a("s_mov_b64 exec, 1", "global_atomic_add_x2 v3, v[4:5], s[48:49] sc1", "s_mov_b64 exec, -1")

def claim_addr(a, t):
    a(f"v_and_b32 v{t}, 7, v1", f"v_lshlrev_b32 v{t}, 3, v{t}", f"v_add_u32 v{t}, s63, v{t}")
def claim_load(a, t):
    a(f"global_load_dwordx2 v[{t+2}:{t+3}], v{t}, s[48:49] sc1")
def claim_test(a, t):
    a(f"v_not_b32 v{t+2}, v{t+2}", f"v_xor_b32 v{t+1}, 0x2000, v{t+3}", f"v_or_b32 v{t+2}, v{t+2}, v{t+1}", f"v_cmp_ne_u32 vcc, 0, v{t+2}")
def par_load(a, t):
    a(f"v_lshlrev_b32 v{t}, 2, v1", f"s_mov_b32 s34, {PAR}", f"buffer_load_dword v{t+1}, v{t}, {WS}, s34 offen sc1")
def par_mask(a, t):
    a(f"v_and_b32 v{t+1}, 1, v{t+1}", f"v_cmp_eq_u32 s[20:21], 1, v{t+1}", "s_nop 3", "s_and_b32 s20, s20, 0xffffff")
    a("s_xor_b32 s21, s20, 0x555555", "s_bcnt1_i32_b32 s21, s21", "s_cmp_le_u32 s21, 4", "s_cselect_b32 s20, 0x555555, s20")
    a("s_cmp_ge_u32 s21, 20", "s_cselect_b32 s20, 0xaaaaaa, s20")

def wait_init(a, SPIN, t):
    l = a.newlab("WI"); g = a.newlab("WG")
    claim_addr(a, t); a("s_mov_b32 s35, 0")
    a.lab(l)
    claim_load(a, t); a("s_waitcnt vmcnt(0)")
    claim_test(a, t); a(f"s_cbranch_vccz {g}")
    a(f"v_lshrrev_b32 v{t+3}, 8, v{t+3}", "s_mov_b32 s30, 0")
    for k in range(8): a(f"v_readlane_b32 s31, v{t+3}, {k}", "s_add_u32 s30, s30, s31")
    a("s_cmp_ge_u32 s30, 256", "s_cbranch_scc1 M_again")
    a("s_sleep 20", "s_add_u32 s35, s35, 1", f"s_cmp_lt_u32 s35, {SPIN}", f"s_cbranch_scc1 {l}", "s_branch M_fail")
    a.lab(g)
    par_load(a, t); a("s_waitcnt vmcnt(0)"); par_mask(a, t)
```

```python
from common import *
import init

SPIN = 200000
OPT = {}
WS = "s[4:7]"
LW = 0
LX = 81920

class Wmap:
    def __init__(s, blocks, ldsblocks):
        s.reg = {}; s.lds = {}
        n = 0
        for b in blocks:
            if b in ldsblocks: s.lds[b] = len(s.lds); continue
            s.reg[b] = ('a', 8 * n) if n < 32 else ('v', 112 + 8 * (n - 32))
            n += 1
        assert n == 50 and len(s.lds) == 10
    def r8(s, b):
        t, i = s.reg[b]; return f"{t}[{i}:{i+7}]"
    def r4(s, b, half):
        t, i = s.reg[b]; return f"{t}[{i+4*half}:{i+4*half+3}]"

def loader(a, pieces, wm, early=None):
    VA, VB, TA, TB, VP, PARK = 20, 23, 28, 29, 30, 32
    NA, NB = 6, 4
    nt = " nt" if OPT.get('ldnt') else ""
    kinds = {p[0] for p in pieces}
    CK0, CK1 = (9, 4) if 'B' in kinds else (13, 6)
    def mk(n, magic, shift, per, pitch, dst):
        for i in range(n):
            a(f"v_add_u32 v4, {64*i}, v1", f"v_mul_u32_u24 v5, {magic}, v4", f"v_lshrrev_b32 v5, {shift}, v5")
            a(f"v_mul_u32_u24 v6, {per}, v5", "v_sub_u32 v4, v4, v6", "v_lshlrev_b32 v4, 4, v4")
            a("v_and_b32 v6, 3, v5", "v_and_b32 v7, 12, v5", "v_lshlrev_b32 v7, 1, v7", "v_add_u32 v6, v6, v7")
            a("v_lshrrev_b32 v7, 4, v5", "v_lshlrev_b32 v7, 2, v7", "v_add_u32 v6, v6, v7")
            a(f"v_mul_u32_u24 v6, {pitch}, v6", f"v_add_u32 v{dst+i}, v6, v4")
    mk(3, 171, 10, 6, 12288, VA)
    a("s_mul_i32 s30, s16, 20480")
    vm = Cnt(a, "vmcnt", 63)
    slot = {}
    na = nb = 0
    for i, p in enumerate(pieces):
        if p[0] == 'A': slot[i] = (na % NA) * 3072; na += 1
        else: slot[i] = (nb % NB) * 5120; nb += 1
    def span(i): return (slot[i], slot[i] + (3072 if pieces[i][0] == 'A' else 5120))
    def issue(i):
        kind, srdn, soff, blks, half = pieces[i]
        soff("s31")
        n, base = (3, VA) if kind == 'A' else (5, VB)
        for j in range(n):
            a(f"s_add_u32 m0, s30, {slot[i]+1024*j}")
            a(f"buffer_load_dwordx4 v{base+j}, {srdn}, s31 offen{nt} lds")
            vm.issue(i)
    nxt = 0; live = []
    def fill():
        nonlocal nxt
        while nxt < len(pieces):
            lo, hi = span(nxt)
            if any(not (hi <= span(j)[0] or lo >= span(j)[1]) for j in live): break
            issue(nxt); live.append(nxt); nxt += 1
    fill()
    if 'B' in kinds: mk(5, 205, 11, 10, 1280, VB)
    a("v_lshrrev_b32 v4, 2, v1", "v_and_b32 v5, 3, v1", "v_lshlrev_b32 v5, 3, v5", "v_add_u32 v5, s30, v5")
    a(f"v_mul_u32_u24 v6, 96, v4", f"v_add_u32 v{TA}, v6, v5")
    a(f"v_mul_u32_u24 v6, 160, v4", f"v_add_u32 v{TB}, v6, v5")
    a("s_mul_i32 s33, s16, 20480", f"v_add_u32 v{VP}, s33, v2")
    for i, p in enumerate(pieces):
        kind, srdn, soff, blks, half = p
        vm.wait(i)
        if OPT.get('ldonly') and i in (0, len(pieces)//4, len(pieces)//2, 3*len(pieces)//4): a(f"s_memrealtime s[{80+2*(4*i//len(pieces))}:{81+2*(4*i//len(pieces))}]")
        tv, jst = (TA, 1536) if kind == 'A' else (TB, 2560)
        for t, b in enumerate(blks):
            ty, r = wm.reg[b] if b in wm.reg else ('v', PARK + 8 * wm.lds[b])
            r += 4 * half
            for jh in range(2):
                a(f"ds_read_b64_tr_b16 {ty}[{r+2*jh}:{r+2*jh+1}], v{tv} offset:{slot[i]+jh*jst+t*32}")
        if nxt < len(pieces): a("s_waitcnt lgkmcnt(0)")
        live.remove(i)
        fill()
        if i == len(pieces) - CK0: init.claim_addr(a, 8); init.claim_load(a, 8); vm.issue('c')
        if i == len(pieces) - CK1:
            vm.wait('c'); init.claim_test(a, 8); a("s_mov_b64 s[56:57], vcc")
            if OPT.get('ct', 0): code_touch(a, 12); vm.issue('t')
            init.par_load(a, 8); vm.issue('p')
            if early:
                for _ in range(early()): vm.issue('e')
    a("s_waitcnt lgkmcnt(0)")
    for k in range(20):
        a(f"ds_write_b128 v{VP}, v[{PARK+4*k}:{PARK+4*k+3}] offset:{LW+k*1024}")
    ok = a.newlab("LD_ok"); dn = a.newlab("LD_dn")
    a("s_cmp_eq_u64 s[56:57], 0", f"s_cbranch_scc1 {ok}")
    init.wait_init(a, SPIN, 4)
    if early: early()
    a(f"s_branch {dn}")
    a.lab(ok)
    vm.wait('p'); init.par_mask(a, 8)
    a.lab(dn)
    a("s_waitcnt lgkmcnt(0)")

def dbgt(a, slot, t):
    if not OPT.get('dbgt'): return
    if slot in (1, 2, 3) and OPT['dbgt'] < 2: return
    a("s_memrealtime s[100:101]", "s_waitcnt lgkmcnt(0)", "s_sub_u32 s100, s100, s98", f"v_mov_b32 v{t}, 0", f"v_mov_b32 v{t+1}, s100")
    a("s_mov_b64 exec, 1", f"global_atomic_umax v{t}, v{t+1}, s[48:49] offset:{4*slot} sc1", "s_mov_b64 exec, -1")

def code_touch(a, t, target=None):
    l = a.newlab("CT")
    a("s_getpc_b64 s[58:59]")
    a.lab(l)
    a(f"v_lshlrev_b32 v{t}, 7, v1")
    if target: a(f"v_add_u32 v{t}, {target}-{l}, v{t}")
    a(f"global_load_dword v{t+1}, v{t}, s[58:59]")

def fail(a):
    a("s_branch M_fail")

def setflag(a, soff, t, wait=0):
    a(f"v_mov_b32 v{t}, 2", f"s_waitcnt vmcnt({wait})")
    a("s_mov_b64 exec, 1", f"buffer_store_dword v{t}, v2, {WS}, {soff} offen sc1", "s_mov_b64 exec, -1")

def earlyflag(a, soff, t):
    a(f"s_cmp_ge_u32 s19, {E0}", f"s_cselect_b32 s33, {soff}, 0x7ffffff0", f"v_mov_b32 v{t}, 1")
    a("s_mov_b64 exec, 1", f"buffer_store_dword v{t}, v2, {WS}, s33 offen sc1", "s_mov_b64 exec, -1")

def setneed(a):
    a(f"s_cmp_ge_u32 s19, {E0}", f"s_cselect_b32 s58, {1 if OPT.get('ef', 1) else 2}, 2")

def waitflags(a, soff, va, t, need="1"):
    l = a.newlab("W"); g = a.newlab("G")
    a("s_mov_b32 s35, 0")
    a.lab(l)
    a(f"buffer_load_dword v{t}, v{va}, {WS}, {soff} offen sc1", "s_waitcnt vmcnt(0)")
    a(f"v_cmp_gt_u32 vcc, {need}, v{t}", f"s_cbranch_vccz {g}")
    a(f"s_sleep {OPT.get('fsl', 2)}", "s_add_u32 s35, s35, 1", f"s_cmp_lt_u32 s35, {SPIN}", f"s_cbranch_scc1 {l}"); fail(a)
    a.lab(g)

def par_off(a, dst, blk):
    a(f"s_lshr_b32 s29, s20, {blk}", "s_and_b32 s29, s29, 1", "s_lshl_b32 s29, s29, 13", f"s_add_u32 {dst}, {dst}, s29")

def ex_base(a, dst, step):
    a(f"s_lshr_b32 s28, {step}, 5", f"s_lshl_b32 {dst}, {step}, 16"); par_off(a, dst, "s28")

def z_base(a, dst, step):
    a(f"s_mul_i32 s28, {step}, 171", "s_lshr_b32 s28, s28, 9")
    a(f"s_mul_i32 s27, s28, 3", f"s_sub_u32 s27, {step}, s27", f"s_mul_i32 s27, s27, {640*1024}")
    a(f"s_add_u32 s28, s28, 2", f"s_lshl_b32 {dst}, s28, 21", f"s_add_u32 {dst}, {dst}, s27"); par_off(a, dst, "s28")
for s_ in range(70): assert (s_ * 171) >> 9 == s_ // 3

def vmap(a, v, t):
    a(f"v_lshrrev_b32 v{t}, 13, v{v}", f"v_lshlrev_b32 v{t}, 13, v{t}", f"v_add_u32 v{v}, v{v}, v{t}")

def chk(a, rs, t):
    lvl = [f"v{r}" for r in rs]; ti = t
    while len(lvl) > 1:
        nx = []
        for i in range(0, len(lvl), 3):
            g = lvl[i:i+3]
            if len(g) == 1: nx.append(g[0]); continue
            d = f"v{ti}"; ti += 1
            a(f"v_max3_u32 {d}, {g[0]}, {g[1]}, {g[2]}" if len(g) == 3 else f"v_max_u32 {d}, {g[0]}, {g[1]}")
            nx.append(d)
        lvl = nx
    a(f"v_cmp_eq_u32 vcc, -1, {lvl[0]}")

class St:
    def __init__(s, a, on): s.a = a; s.on = on
    def __call__(s, i):
        if s.on and (OPT.get('sm', 255) >> i) & 1:
            if OPT.get('cyc'):
                s.a(f"s_memtime s[{80+2*i}:{81+2*i}]"); return
            if i >= 6: return
            s.a(f"s_memrealtime s[{80+2*i}:{81+2*i}]")
            if i == 0: s.a("s_memtime s[92:93]")
            if i == 1: s.a("s_memtime s[94:95]")
    def loaded(s):
        if not s.on: return
        a = s.a
        a("s_memrealtime s[100:101]", "s_waitcnt lgkmcnt(0)", "v_mov_b32 v60, s98", "v_mov_b32 v61, s100")
        a("s_lshl_b32 s96, s3, 5", "s_lshl_b32 s97, s16, 3", "s_add_u32 s96, s96, s97", f"s_add_u32 s96, s96, {STAMP+4*MB}")
        a("s_mov_b64 exec, 1", f"buffer_store_dwordx2 v[60:61], v2, {WS}, s96 offen", "s_mov_b64 exec, -1")
        if OPT.get('ldonly'):
            a("s_mov_b32 s19, 0"); s.dump(64); a("s_endpgm")
    def init(s):
        if s.on:
            s.a("s_memrealtime s[98:99]")
            for i in range(8): s.a(f"s_mov_b32 s{80+2*i}, 0")
    def dump(s, t, step="s19", second=False):
        if not s.on: return
        a = s.a
        a("s_waitcnt lgkmcnt(0)")
        for i in range(8): a(f"v_mov_b32 v{t+i}, s{80+2*i}")
        a("s_lshl_b32 s96, s3, 13", f"s_lshl_b32 s97, {step}, 7", "s_add_u32 s96, s96, s97", "s_lshl_b32 s97, s16, 5", "s_add_u32 s96, s96, s97", f"s_add_u32 s96, s96, {STAMP+(2*MB if second else 0)}")
        a("s_mov_b64 exec, 1")
        a(f"buffer_store_dwordx4 v[{t}:{t+3}], v2, {WS}, s96 offen", f"buffer_store_dwordx4 v[{t+4}:{t+7}], v2, {WS}, s96 offen offset:16")
        a("s_mov_b64 exec, -1")

IDX = 3; P0 = 4; P1 = 5; LRD = 9
WLD = 12
PR = 16; AF = 28; ACC = 60
LMEM = LX

def idx_setup(a, T):
    a(f"v_and_b32 v{T}, 2, v1", f"v_cmp_eq_u32 vcc, 0, v{T}", f"v_mov_b32 v{T}, 0x4444", f"v_mov_b32 v{T+1}, 0xeeee")
    a(f"v_cndmask_b32 v{IDX}, v{T+1}, v{T}, vcc")

def crit_setup(a, TMP):
    idx_setup(a, TMP)
    a("s_lshl_b32 s30, s16, 11", "s_lshl_b32 s31, s16, 9")
    a(f"v_add_u32 v{P0}, s30, v2", f"v_add_u32 v{P1}, s31, v2")
    a(f"v_add_u32 v{P0}, 20480, v{P0}", f"v_add_u32 v{P1}, {20480+8192}, v{P1}")
    vmap(a, P0, TMP + 1); vmap(a, P1, TMP + 1)
    a(f"s_add_u32 s52, s30, {LMEM}", f"s_add_u32 s53, s31, {LMEM+8192}")
    for p in range(1, 4):
        a(f"s_xor_b32 s31, s30, {p*2048}", f"s_add_u32 s31, s31, {LMEM}", f"v_add_u32 v{LRD+p-1}, s31, v2")
    a(f"v_add_u32 v13, {LMEM+8192}, v2")
    a("s_mul_i32 s30, s16, 20480", f"v_add_u32 v{WLD}, s30, v2")
    for i in range(8, 12): a(f"v_mov_b32 v{PR+i}, 0")
    a("s_lshl_b32 s30, s16, 3", "v_add_u32 v0, s30, v1", "s_lshl_b32 s30, s16, 1", "s_add_u32 s30, s30, 24", f"v_add_u32 v{TMP}, s30, v1")
    a("v_cmp_gt_u32 vcc, 8, v1", f"v_cndmask_b32 v0, v{TMP}, v0, vcc", "v_lshlrev_b32 v0, 7, v0")
    hu_base(a, "s70", HUR)

def crit_soff(a, colreg, sig, half):
    def f(dst):
        if sig < 8:
            a(f"s_lshl_b32 s32, s16, 1", f"s_xor_b32 s32, s32, {sig}", "s_lshl_b32 s32, s32, 1", f"s_add_u32 s32, s32, {half}")
            a(f"s_mul_i32 s32, s32, {32*12288}", f"s_add_u32 {dst}, s32, {colreg}")
        else:
            a(f"s_add_u32 {dst}, {colreg}, {(2*sig+half)*32*12288}")
    return f

class Sched:
    def __init__(s, a, lg): s.a = a; s.lg = lg; s.mm = []; s.at = {}
    def add(s, text, needs=()): s.mm.append((text, list(needs))); return len(s.mm) - 1
    def fill(s, n, text, tag=None, pre=()):
        s.at.setdefault(n, []).append((text, tag, pre))
    def emit(s, lo=0, hi=None):
        hi = len(s.mm) if hi is None else hi
        for n in range(lo, hi):
            t, needs = s.mm[n]
            for d in needs: s.lg.wait(d)
            s.a(t)
            if n + 1 < hi:
                for d in s.mm[n + 1][1]: s.lg.wait(d)
            for text, tag, pre in s.at.get(n, []):
                for d in pre: s.lg.wait(d)
                s.a(text)
                if tag is not None: s.lg.issue(tag)

def add2(r):
    if OPT.get('pk', 0): return [f"v_pk_add_f32 v[{r}:{r+1}], v[{r}:{r+1}], v[{r+2}:{r+3}]"]
    return [f"v_add_f32 v{r}, v{r}, v{r+2}", f"v_add_f32 v{r+1}, v{r+1}, v{r+3}"]

def areg(sig): return PR + 4 * sig if sig < 2 else AF + 4 * (sig - 2)

def a_read(c):
    r = AF + 4 * c
    return f"ds_read_b128 v[{r}:{r+3}], v{LRD+c//2} offset:{(c%2)*1024}" if c < 6 else f"ds_read_b128 v[{r}:{r+3}], v13 offset:{(c-6)*1024}"

def hu_base(a, dst, base):
    a(f"s_mov_b32 {dst}, {base}"); par_off(a, dst, "2")

def hu_wait(a, tag, va, soff, want, R, depth, mask):
    a("s_mov_b32 s35, 0", f"s_mov_b64 exec, {mask}")
    for k in range(depth - 1):
        a(f"buffer_load_dword v{R+k}, v{va}, {WS}, {soff} offen sc1", "s_nop 15")
    a.lab(f"{tag}_hu")
    for k in range(depth):
        a(f"buffer_load_dword v{R+(k+depth-1)%depth}, v{va}, {WS}, {soff} offen sc1")
        if OPT.get('hp', 0): a(f"s_nop {OPT['hp']}")
        a(f"s_waitcnt vmcnt({depth-1})")
        a(f"v_cmp_gt_u32 vcc, {want}, v{R+k}", f"s_cbranch_vccz {tag}_hud")
    a("s_add_u32 s35, s35, 1", f"s_cmp_lt_u32 s35, {SPIN}", f"s_cbranch_scc1 {tag}_hu"); fail(a)
    a.lab(f"{tag}_hud")
    a("s_mov_b32 s35, 0", "s_mov_b64 exec, -1")

def poll_mem(a, tag, TMP, st):
    if OPT.get('hur', 1) and tag == "QK":
        a("s_cmp_lg_u32 s35, 0", "s_cbranch_scc1 QK_poll")
        a("s_cmp_ge_u32 s16, 2", "s_cbranch_scc1 QK_hub")
        hu_wait(a, tag, 0, "s70", "s19", PR, OPT.get('hdq', 4), "0xfffff")
        a.lab("QK_hub")
        a("s_barrier")
        for _ in range(OPT.get('qz', 5)): a("s_nop 7")
    elif OPT.get('hur', 1):
        hu_wait(a, tag, 0, "s70", "s19", PR, OPT.get('hd', 4), "0x3ff")
        for _ in range(OPT.get('vz', 5)): a("s_nop 7")
    st(5)
    a.lab(f"{tag}_poll")
    a(f"buffer_load_dwordx4 v[{PR}:{PR+3}], v{P0}, {WS}, s24 offen sc1", f"buffer_load_dwordx4 v[{PR+4}:{PR+7}], v{P0}, {WS}, s24 offen offset:1024 sc1")
    a("s_mov_b32 exec_hi, 0", "s_mov_b32 m0, s53")
    a(f"buffer_load_dwordx4 v[{PR+8}:{PR+11}], v{P1}, {WS}, s24 offen sc1")
    a(f"buffer_load_dwordx4 v{P1}, {WS}, s24 offen sc1 lds")
    a("s_mov_b32 exec_hi, -1", "s_mov_b32 m0, s52", "s_add_u32 s35, s35, 1")
    a(f"buffer_load_dwordx4 v{P0}, {WS}, s24 offen sc1 lds", f"buffer_load_dwordx4 v{P0}, {WS}, s24 offen offset:1024 sc1 lds")
    a(f"s_cmp_ge_u32 s35, {SPIN}", "s_cbranch_scc1 M_fail")
    a("s_waitcnt vmcnt(3)")
    a(f"v_max3_u32 v{TMP}, v{PR+3}, v{PR+7}, v{PR+11}", f"v_cmp_eq_u32 vcc, -1, v{TMP}")
    a(f"s_cbranch_vccnz {tag}_poll")
    st(4)
    if st.on: a("s_mov_b32 s73, s35")

def full_chk(TMP):
    return [f"v_max3_u32 v{TMP+k}, v{PR+4*k}, v{PR+4*k+1}, v{PR+4*k+2}" for k in range(3)] + \
           [f"v_max3_u32 v{TMP}, v{TMP}, v{TMP+1}, v{TMP+2}", f"v_cmp_eq_u32 vcc, -1, v{TMP}"]

def role_qk(a, st):
    STG = 84; TMP = 100
    LKX = LMEM + 10240
    LQK = LKX + 24576
    blocks = [(m, t, s) for s in range(10) for m in range(2) for t in range(3)]
    ldsb = {(1 - (s % 2), 2, s) for s in range(10)}
    wm = Wmap(blocks, ldsb)
    a.lab("M_qk")
    srd(a, 8, 40, 640 * 12288); srd(a, 12, 42, 640 * 12288)
    a("s_mul_i32 s36, s17, 384", "s_mul_i32 s30, s16, 96", "s_add_u32 s36, s36, s30")
    pieces = []
    for sgs in ((0, 2, 4, 6), (1, 3, 5, 7), (8, 9)):
        for half in range(2):
            for m in range(2):
                for s in sgs:
                    pieces.append(('A', "s[8:11]" if m == 0 else "s[12:15]", crit_soff(a, "s36", s, half), [(m, t, s) for t in range(3)], half))
    loader(a, pieces, wm); dbgt(a, 1, 4); st.loaded()
    crit_setup(a, TMP)
    KW = 14; XR = 15; KA = 6; AX = 7; AM = 8; QW = 108; QR = 111
    a(f"v_lshrrev_b32 v{TMP+1}, 4, v1")
    a(f"v_and_b32 v{KW}, 0xff, v2", f"v_lshlrev_b32 v{TMP+2}, 2, v{TMP+1}", f"v_add_u32 v{KW}, v{KW}, v{TMP+2}")
    a("s_mul_i32 s30, s16, 768", f"s_add_u32 s30, s30, {LQK+3072}", f"v_add_u32 v{KW}, s30, v{KW}")
    a(f"v_lshrrev_b32 v{TMP}, 2, v1", f"v_lshlrev_b32 v{TMP}, 4, v{TMP}", f"v_and_b32 v{TMP+2}, 1, v1", f"v_lshlrev_b32 v{TMP+2}, 3, v{TMP+2}")
    a(f"v_add_u32 v{XR}, v{TMP}, v{TMP+2}", f"v_add_u32 v{XR}, {LQK+3072}, v{XR}")
    a(f"v_and_b32 v{TMP}, 12, v1", f"v_lshlrev_b32 v{TMP}, 5, v{TMP}", f"v_and_b32 v{TMP+2}, 1, v1", f"v_lshlrev_b32 v{TMP+2}, 5, v{TMP+2}", f"v_add_u32 v{TMP}, v{TMP}, v{TMP+2}")
    a(f"v_lshlrev_b32 v{TMP+2}, 3, v{TMP+1}", f"v_and_b32 v{TMP+3}, 2, v1", f"v_lshlrev_b32 v{TMP+3}, 1, v{TMP+3}", f"v_add3_u32 v{TMP}, v{TMP}, v{TMP+2}, v{TMP+3}")
    for t in range(3):
        a("s_mul_i32 s30, s16, 3", f"s_add_u32 s30, s30, {t}", "s_lshr_b32 s31, s30, 1", "s_lshl_b32 s31, s31, 9", "s_and_b32 s30, s30, 1", "s_lshl_b32 s30, s30, 6")
        a("s_add_u32 s30, s30, s31", f"s_add_u32 s30, s30, {LQK}", f"v_add_u32 v{QW+t}, s30, v{TMP}")
    a(f"v_lshlrev_b32 v{TMP}, 8, v{TMP+1}", f"v_and_b32 v{TMP+2}, 15, v1", f"v_lshlrev_b32 v{TMP+2}, 3, v{TMP+2}", f"v_add_u32 v{QR}, v{TMP}, v{TMP+2}", f"v_add_u32 v{QR}, {LQK}, v{QR}")
    a("s_lshr_b32 s30, s17, 3", "s_mul_i32 s30, s30, 5120", "s_and_b32 s31, s17, 7", "s_lshl_b32 s32, s31, 9", "s_add_u32 s32, s32, s30")
    a("s_lshl_b32 s31, s31, 7", "s_add_u32 s31, s31, s30", "s_add_u32 s31, s31, 4096")
    a(f"v_and_b32 v{TMP}, 8, v1", f"v_and_b32 v{TMP+2}, 48, v1", f"v_and_b32 v{TMP+3}, 7, v1", f"v_lshlrev_b32 v{TMP+3}, 1, v{TMP+3}", f"v_add_u32 v{TMP+2}, v{TMP+2}, v{TMP+3}")
    a("s_lshl_b32 s33, s16, 6", "s_add_u32 s33, s33, s31", f"v_add_u32 v{AM}, s33, v{TMP+2}")
    a("s_lshl_b32 s33, s16, 7", "s_add_u32 s33, s33, s32", f"v_lshlrev_b32 v{AX}, 5, v{TMP}", f"v_lshlrev_b32 v{TMP+2}, 1, v{TMP+2}", f"v_add3_u32 v{AX}, v{AX}, v{TMP+2}, s33")
    vmap(a, AX, TMP + 3); vmap(a, AM, TMP + 3)
    a("s_mul_i32 s33, s16, 20", "v_add_u32 v0, s33, v1", "v_lshlrev_b32 v0, 7, v0")
    a("s_cmp_lt_u32 s16, 2", "s_cbranch_scc1 QK_set1")
    a(f"v_add_u32 v0, s32, v2", "s_sub_u32 s31, s31, 512", f"v_add_u32 v{AM}, s31, v2", "v_cmp_gt_u32 vcc, 32, v1", f"v_cndmask_b32 v0, v{AM}, v0, vcc")
    vmap(a, 0, TMP + 3)
    a(f"v_and_b32 v{TMP}, 56, v1", f"v_and_b32 v{TMP+2}, 4, v1", f"v_lshrrev_b32 v{TMP+2}, 1, v{TMP+2}", f"v_add_u32 v{TMP}, v{TMP}, v{TMP+2}")
    a(f"v_and_b32 v{TMP+2}, 2, v1", f"v_lshlrev_b32 v{TMP+2}, 1, v{TMP+2}", "s_and_b32 s30, s16, 1", f"v_add3_u32 v{TMP}, v{TMP}, v{TMP+2}, s30", f"v_lshlrev_b32 v{TMP}, 4, v{TMP}")
    a(f"v_and_b32 v{TMP+2}, 1, v1", f"v_mul_u32_u24 v{TMP+2}, 6144, v{TMP+2}", f"v_add_u32 v{AX}, v{TMP}, v{TMP+2}")
    a(f"v_and_b32 v{AM}, 1, v1", f"v_lshlrev_b32 v{AM}, 2, v{AM}")
    a.lab("QK_set1")
    a("s_mov_b32 s72, 0x7ffffff0")
    hu_base(a, "s71", HUQ); a("s_lshl_b32 s30, s17, 7", "s_add_u32 s71, s71, s30", "s_cmp_eq_u32 s16, 2", "s_cselect_b32 s71, s71, 0x7ffffff0")
    a("s_mov_b32 s37, 0x3dd53b95")
    a("s_mov_b32 s54, 0xff00ff00", "s_mov_b32 s55, 0xff00ff00", "s_mov_b32 s56, 0x00550055", "s_mov_b32 s57, 0x00550055", "s_mov_b32 s58, 0x42700000")
    a("s_barrier")
    KF = 8
    def kx_fetch(tag, seg, first):
        a(f"s_lshl_b32 s30, {seg}, 5", "s_add_u32 s30, s30, s17", "s_lshl_b32 s31, s30, 4", f"s_add_u32 s31, s31, {KXF+8}")
        a(f"s_mul_i32 s30, s30, 12288", f"s_add_u32 s30, s30, {KX}")
        a(f"s_and_b32 s32, {seg}, 1", "s_mul_i32 s32, s32, 12288", "s_and_b32 s33, s16, 1", "s_mul_i32 s33, s33, 6144", "s_add_u32 s32, s32, s33", f"s_add_u32 s32, s32, {LKX}")
        a("s_mov_b32 s35, 0")
        if not first: a(f"v_cmp_eq_u32 vcc, 0, v{TMP+6}", f"s_cbranch_vccz {tag}_g")
        a.lab(f"{tag}_f")
        a(f"buffer_load_dword v{TMP+6}, v{KF}, {WS}, s31 offen sc1", "s_waitcnt vmcnt(0)")
        a(f"v_cmp_eq_u32 vcc, 0, v{TMP+6}", f"s_cbranch_vccz {tag}_g")
        a("s_sleep 2", "s_add_u32 s35, s35, 1", f"s_cmp_lt_u32 s35, {SPIN}", f"s_cbranch_scc1 {tag}_f"); fail(a)
        a.lab(f"{tag}_g")
        for f in range(6):
            a(f"s_add_u32 m0, s32, {1024*f}", f"buffer_load_dwordx4 v{AX}, {WS}, s30 offen sc1 lds", "s_add_u32 s30, s30, 1024")
        a(f"buffer_load_dword v{TMP+6}, v{KF}, {WS}, s31 offen offset:512 sc1")
    a("s_mov_b32 s19, 0", f"s_mov_b32 s24, {M0B}")
    a("s_cmp_lt_u32 s16, 2", "s_cbranch_scc1 QK_step")
    kx_fetch("QK_k0", "s19", True)
    lg = Cnt(a, "lgkmcnt", 15)
    a.lab("QK_step")
    ex_base(a, "s25", "s19")
    a("s_mov_b32 s35, 0")
    a("s_and_b32 s30, s19, 1", "s_mul_i32 s30, s30, 12288", f"s_add_u32 s30, s30, {LKX}", f"v_add_u32 v{KA}, s30, v2")
    for i in range(8, 12): a(f"v_mov_b32 v{PR+i}, 0")
    tiles = [(0, 0), (0, 1), (0, 2), (1, 0), (1, 1), (1, 2)]
    order = [(0, i) for i in (5, 0, 1, 2, 3, 4)] + [(1, i) for i in (2, 0, 1, 3, 4, 5)] + [(sg, i) for sg in range(2, 10) for i in range(3)] + \
            [(sg, i) for sg in range(2, 8) for i in range(3, 6)] + [(8, 5), (9, 5), (8, 3), (9, 3), (8, 4), (9, 4)]
    lb = [tiles[i] + (sg,) for sg, i in order if tiles[i] + (sg,) in wm.lds]
    def wld(k):
        r = STG + 8 * (k % 2)
        return [(f"ds_read_b128 v[{r+4*h}:{r+4*h+3}], v{WLD} offset:{LW+wm.lds[lb[k]]*2048+h*1024}", ('w', k)) for h in range(2)]
    def cvw(i):
        r = ACC + 4 * i
        return [f"v_add_f32 v{r}, v{r}, v{r+2}", f"v_add_f32 v{r+1}, v{r+1}, v{r+3}", f"v_cvt_pk_bf16_f32 v{TMP+3+i%3}, v{r}, v{r+1}",
                f"ds_write_b32 v{QW+i}, v{TMP+3+i}" if i < 3 else f"ds_write_b32 v{KW}, v{TMP+i} offset:{(i%3)*256}"]
    HUS = ["s_mov_b64 exec, 1", f"buffer_store_dword v{TMP+7}, v2, {WS}, s71 offen sc1", "s_mov_b64 exec, -1"]
    a("s_add_u32 s30, s19, 1", f"v_mov_b32 v{TMP+7}, s30")
    T = ACC
    KB = [AF, AF + 8, STG, AF + 16, STG + 8, AF + 24]
    XK = [AF, AF + 8, STG]
    def rdx(r, f):
        return [(f"ds_read_b64_tr_b16 v[{r+2*jh}:{r+2*jh+1}], v{XR} offset:{f*512+jh*256}", ('x', f // 2)) for jh in range(2)]
    def rdq(k):
        return [(f"ds_read_b64_tr_b16 v[{PR+4*k+2*jh}:{PR+4*k+2*jh+1}], v{QR} offset:{k*1024+jh*128}", ('q', k)) for jh in range(2)]
    def rdk(n):
        return [(f"ds_read_b128 v[{KB[n]+4*h}:{KB[n]+4*h+3}], v{KA} offset:{(n%2)*6144+(2*(n//2)+h)*1024}", ('k', n)) for h in range(2)]
    def build(w0):
        sc = Sched(a, lg)
        busy = set()
        def put(n, text, tag=None, pre=()):
            while n in busy: n += 1
            busy.add(n); sc.at.setdefault(n, []).insert(0, (text, tag, pre)); return n
        for n, (sg, i) in enumerate(order):
            b = tiles[i] + (sg,); needs = []
            if sg >= 2: needs.append(('a', sg))
            if b in wm.reg: w = wm.r8(b)
            else:
                k = lb.index(b); needs.append(('w', k)); w = f"v[{STG+8*(k%2)}:{STG+8*(k%2)+7}]"
            sc.add(f"v_smfmac_f32_16x16x64_bf16 v[{ACC+4*i}:{ACC+4*i+3}], v[{areg(sg)}:{areg(sg)+3}], {w}, v{IDX}", needs)
        for k, x in enumerate(full_chk(TMP)): sc.fill(k, x)
        B1 = OPT.get('qb1', 5)
        sc.fill(B1, "s_cbranch_vccnz QK_pre"); sc.fill(B1, "s_waitcnt vmcnt(0)"); sc.fill(B1, "s_barrier"); busy.add(B1)
        for c in range(8): put(B1 + 1 + c, a_read(c), ('a', c + 2))
        for k in range(2, 10):
            n = next(n for n, (sg, i) in enumerate(order) if tiles[i] + (sg,) == lb[k - 2])
            for text, tag in wld(k): put(n, text, tag)
        n = 38
        for i in range(3):
            for x in cvw(i)[:3]: sc.fill(n, x); n += 1
            put(n, cvw(i)[3], 'qw')
        for x in ("s_mov_b64 exec, 1", f"buffer_store_dword v{TMP+7}, v2, {WS}, s72 offen sc1", "s_mov_b64 exec, -1"): sc.fill(21, x)
        sc.fill(32, "s_cmp_lt_u32 s16, 2")
        B2 = 50
        sc.fill(B2, "s_barrier", None, ['qw']); busy.add(B2)
        sc.fill(59, cvw(5)[0])
        hq = OPT.get('hq', 50)
        while hq in busy: hq += 1
        if (not w0 or hq < 42) and hq < 59:
            for x in HUS: sc.fill(hq, x)
        if w0:
            for x in rdk(0): put(42, *x)
            for x in rdk(1): put(48, *x)
            for x in rdq(0): put(51, *x)
            for x in rdk(2): put(51, *x)
            for x in rdq(1): put(51, *x)
            for x in rdk(3): put(54, *x)
            for h in range(6): sc.fill(48 + h + (h >= 2), f"v_mov_b64 v[{T+2*h}:{T+2*h+1}], 0")
        return sc
    a.lab("QK_pre")
    for i in range(12): a(f"v_mov_b64 v[{ACC+2*i}:{ACC+2*i+1}], 0")
    for k in range(2):
        for text, tag in wld(k): a(text)
    lg.waitall()
    if OPT.get('qdel'):
        a("s_cmp_ge_u32 s16, 2", "s_cbranch_scc1 QK_poll")
        for _ in range(OPT['qdel']): a("s_sleep 1")
    poll_mem(a, "QK", TMP, st)
    sc0, sc1 = build(False), build(True)
    SPLIT = 42
    sc0.emit(0, SPLIT)
    save = list(lg.q)
    a("s_cbranch_scc1 QK_w0")
    sc0.emit(SPLIT)
    st(0)
    for x in cvw(5)[1:] + cvw(3) + cvw(4): a(x)
    a("s_waitcnt lgkmcnt(0)", "s_barrier"); lg.reset()
    if OPT.get('hq', 50) >= 59:
        for _ in range(OPT['hq'] - 60): a("s_nop 3")
        a(*HUS)
    a("s_cmp_eq_u32 s16, 2", "s_cbranch_scc1 QK_w2")
    for f in range(6):
        for text, tag in rdx(AF + 4 * f, f): a(text)
    a("s_lshl_b32 s30, s19, 5", "s_add_u32 s30, s30, s17", "s_lshl_b32 s31, s30, 7", f"s_add_u32 s72, s31, {KMF}", "s_mul_i32 s30, s30, 6144", f"s_add_u32 s26, s30, {KM}")
    lg.waitall()
    a("s_cmp_eq_u32 s19, 63", "s_cbranch_scc1 QK_km")
    a("s_barrier")
    a.lab("QK_km")
    for f in range(6):
        a(f"buffer_store_dwordx4 v[{AF+4*f}:{AF+4*f+3}], v2, {WS}, s26 offen sc1", "s_add_u32 s26, s26, 1024")
    earlyflag(a, "s72", TMP)
    a("s_cmp_lt_u32 s19, 63", "s_cbranch_scc1 QK_w23")
    setflag(a, "s72", TMP)
    a("s_endpgm")
    a.lab("QK_w2")
    a("s_cmp_eq_u32 s19, 63", "s_cbranch_scc1 M_done")
    a("s_add_u32 s34, s19, 2", "s_min_u32 s34, s34, 63")
    ex_base(a, "s26", "s34")
    for i in range(4): a(f"v_mov_b32 v{TMP+i}, -1")
    a("s_barrier")
    a("s_mov_b32 exec_hi, 0xff", f"buffer_store_dwordx4 v[{TMP}:{TMP+3}], v0, {WS}, s26 offen sc1", "s_mov_b32 exec_hi, -1")
    a.lab("QK_w23")
    a("s_add_u32 s34, s19, 1")
    kx_fetch("QK_kn", "s34", False)
    a("s_branch QK_next")
    a.lab("QK_w0")
    lg.q = save
    sc1.emit(SPLIT)
    st(0)
    sc = Sched(a, lg)
    for n in range(6):
        k, kt = n // 2, n % 2
        sc.add(f"v_smfmac_f32_16x16x64_bf16 v[{T+4*kt}:{T+4*kt+3}], v[{PR+4*k}:{PR+4*k+3}], v[{KB[n]}:{KB[n]+7}], v{IDX}", [('q', k), ('k', n)])
    c5, c3, c4 = cvw(5), cvw(3), cvw(4)
    a(c5[1], c5[2])
    sc.fill(0, c5[3], 'kw'); sc.fill(0, c3[0]); sc.fill(0, c3[1]); sc.fill(0, c3[2])
    sc.fill(1, c3[3], 'kw'); sc.fill(1, c4[0]); sc.fill(1, c4[1]); sc.fill(1, c4[2])
    sc.fill(2, c4[3], 'kw'); sc.fill(2, *rdq(2)[0]); sc.fill(2, *rdq(2)[1]); sc.fill(2, *rdk(4)[0])
    sc.fill(3, *rdk(4)[1]); sc.fill(3, *rdk(5)[0]); sc.fill(3, *rdk(5)[1]); sc.fill(3, "s_cmp_eq_u32 s19, 63")
    sc.emit(0, 4)
    lg.wait('kw'); a("s_barrier", "s_cbranch_scc1 M_done", "s_cmp_eq_u32 s16, 1")
    xr = [x for f in range(6) for x in rdx(XK[f // 2] + 4 * (f % 2), f)]
    def rx(n):
        for _ in range(n):
            x = xr.pop(0); a(x[0]); lg.issue(x[1])
    rx(4); sc.emit(4, 5); rx(1); sc.emit(5, 6); rx(3)
    a("s_cbranch_scc1 QK_b1")
    st(2)
    full = "row_mask:0xf bank_mask:0xf"
    E = TMP; L = ACC + 12; O = ACC + 16
    keep = (list(lg.q), list(xr))
    for b in range(2):
        if b: a.lab("QK_b1")
        lg.q, xr = list(keep[0]), list(keep[1])
        UU = [T + b, T + 4 + b, T + 8 + b]
        def t2(k):
            lg.wait(('x', k))
            a(f"v_smfmac_f32_16x16x64_bf16 v[{T+8}:{T+11}], v[{PR+4*k}:{PR+4*k+3}], v[{XK[k]}:{XK[k]+7}], v{IDX}")
        ror = lambda op, r, sh: f"{op}_dpp v{r}, v{r}, v{r} row_ror:{sh} {full}"
        t2(0); rx(2)
        a(f"v_add_f32 v{UU[0]}, v{UU[0]}, v{UU[0]+2}")
        rx(2)
        a(f"v_add_f32 v{UU[1]}, v{UU[1]}, v{UU[1]+2}")
        t2(1)
        a(f"v_mul_f32 v{UU[0]}, s37, v{UU[0]}", f"v_mul_f32 v{UU[1]}, s37, v{UU[1]}")
        t2(2)
        a(f"v_exp_f32 v{E}, v{UU[0]}", f"v_exp_f32 v{E+1}, v{UU[1]}", f"v_add_f32 v{L}, v{E}, v{E+1}")
        a(ror("v_add_f32", L, 8))
        st(3)
        a(f"v_add_f32 v{UU[2]}, v{UU[2]}, v{UU[2]+2}", f"v_mul_f32 v{UU[2]}, s37, v{UU[2]}", f"v_exp_f32 v{E+2}, v{UU[2]}")
        a(f"v_max3_f32 v{L+1}, |v{UU[0]}|, |v{UU[1]}|, |v{UU[2]}|", f"v_add_f32 v{L}, v{L}, v{E+2}", f"v_cmp_nge_f32 vcc, s58, v{L+1}")
        a(f"s_cbranch_vccnz QK_truemax{b}")
        a.lab(f"QK_sum{b}")
        for sh in (4, 2, 1): a(ror("v_add_f32", L, sh))
        a(f"v_rcp_f32 v{L}, v{L}")
        a(f"v_mul_f32 v{E+2}, v{E+2}, v{L}", f"v_mul_f32 v{E}, v{E}, v{L}", f"v_mul_f32 v{E+1}, v{E+1}, v{L}")
        a(f"v_mov_b32_dpp v{L+2}, v{E+2} quad_perm:[1,0,3,2] {full}", f"v_cvt_pk_bf16_f32 v{O}, v{E}, v{E+1}")
        a(f"buffer_store_dword v{O}, v{AX}, {WS}, s25 offen sc1")
        a(f"v_cvt_pk_bf16_f32 v{O+1}, v{E+2}, v{L+2}", "s_mov_b64 exec, s[56:57]")
        a(f"buffer_store_dword v{O+1}, v{AM}, {WS}, s25 offen sc1")
        a("s_mov_b64 exec, -1", "s_barrier")
        st(1)
        if b == 0: a("s_branch QK_next")
    a.lab("QK_next")
    if st.on and not OPT.get('cyc'): a("s_waitcnt lgkmcnt(0)", "s_mov_b32 s86, s73")
    st.dump(STG)
    a("s_add_u32 s19, s19, 1")
    ex_base(a, "s24", "s19")
    a("s_branch QK_step")
    for b in range(2):
        UU = [T + b, T + 4 + b, T + 8 + b]
        a.lab(f"QK_truemax{b}")
        a(f"v_max3_f32 v{L+1}, v{UU[0]}, v{UU[1]}, v{UU[2]}")
        for sh in (8, 4, 2, 1): a(ror("v_max_f32", L + 1, sh))
        for r in range(3): a(f"v_sub_f32 v{E+r}, v{UU[r]}, v{L+1}")
        for r in range(3): a(f"v_exp_f32 v{E+r}, v{E+r}")
        a(f"v_add_f32 v{L}, v{E}, v{E+1}", ror("v_add_f32", L, 8), f"v_add_f32 v{L}, v{L}, v{E+2}", "s_nop 1", f"s_branch QK_sum{b}")

def vo_pieces(a, crit):
    pieces = []
    for s, half in [(s, h) for sgs in ((0, 2, 4, 6), (1, 3, 5, 7), (8, 9)) for h in range(2) for s in sgs]:
        if True:
            so = crit_soff(a, "s36", s, half) if crit else (lambda dst, k=2*s+half: a(f"s_add_u32 {dst}, s36, {k*32*12288}"))
            pieces.append(('A', "s[8:11]", so, [(0, t, s) for t in range(3)], half))
    for kf in range(6):
        for p in range(2):
            so = lambda dst, o=kf*32*1280+p*160: a(f"s_add_u32 {dst}, s37, {o}")
            pieces.append(('B', "s[12:15]", so, [(1, 5 * p + t, kf // 2) for t in range(5)], kf % 2))
    return pieces

def vo_wmap(ldsb=None):
    blocks = [(0, t, s) for s in range(10) for t in range(3)] + [(1, t, k) for t in range(10) for k in range(3)]
    return Wmap(blocks, ldsb or {(1, t, 2) for t in range(10)})

def vo_srds(a):
    srd(a, 8, 44, 640 * 12288); srd(a, 12, 46, 6144 * 1280)
    a("s_mul_i32 s36, s17, 384", "s_mul_i32 s30, s16, 96", "s_add_u32 s36, s36, s30")
    a(f"s_mul_i32 s37, s17, {192*1280}", "s_mul_i32 s30, s16, 320", "s_add_u32 s37, s37, s30")

def role_vo(a, st):
    STG = 80; TMP = 104
    LV = LMEM + 10240
    tord = [8, 9, 0, 1, 2, 3, 4, 5, 6, 7]
    lb = [(0, 2, 0), (0, 2, 1), (0, 2, 3), (0, 2, 6), (0, 2, 8), (1, 8, 2), (1, 9, 2), (1, 1, 2), (1, 4, 2), (1, 6, 2)]
    wm = vo_wmap(set(lb))
    a.lab("M_vo")
    vo_srds(a)
    loader(a, vo_pieces(a, True), wm); st.loaded()
    crit_setup(a, TMP)
    VW = 14; VR = 15; ZA = 6
    a(f"v_and_b32 v{TMP}, 12, v1", f"v_lshlrev_b32 v{TMP}, 4, v{TMP}", f"v_and_b32 v{TMP+1}, 1, v1", f"v_lshlrev_b32 v{TMP+1}, 5, v{TMP+1}", f"v_add_u32 v{TMP}, v{TMP}, v{TMP+1}")
    a(f"v_and_b32 v{TMP+1}, 48, v1", f"v_lshrrev_b32 v{TMP+1}, 1, v{TMP+1}", f"v_and_b32 v{TMP+2}, 2, v1", f"v_lshlrev_b32 v{TMP+2}, 1, v{TMP+2}")
    a(f"v_add3_u32 v{VW}, v{TMP}, v{TMP+1}, v{TMP+2}", "s_mul_i32 s30, s16, 768", f"s_add_u32 s30, s30, {LV}", f"v_add_u32 v{VW}, s30, v{VW}")
    a(f"v_and_b32 v{TMP}, 48, v1", f"v_lshlrev_b32 v{TMP}, 4, v{TMP}", f"v_and_b32 v{TMP+1}, 15, v1", f"v_lshlrev_b32 v{TMP+1}, 3, v{TMP+1}")
    a(f"v_add_u32 v{VR}, v{TMP}, v{TMP+1}", f"v_add_u32 v{VR}, {LV}, v{VR}")
    a(f"v_lshlrev_b32 v{ZA}, 2, v1")
    a(f"s_mul_i32 s38, s16, {10*16384}", "s_lshl_b32 s30, s17, 8", "s_add_u32 s38, s38, s30")
    a("s_barrier")
    a("s_mov_b32 s19, 0", f"s_mov_b32 s24, {M0B}")
    lg = Cnt(a, "lgkmcnt", 15)
    a.lab("VO_step")
    z_base(a, "s25", "s19"); a("s_add_u32 s25, s25, s38")
    for t in range(10): a(f"s_add_u32 s{60+t}, s25, {16384*t}")
    a("s_mov_b32 s35, 0")
    for i in range(8, 12): a(f"v_mov_b32 v{PR+i}, 0")
    G = lambda t: AF + 4 * t if t < 8 else 72 + 4 * (t - 8)
    VF = PR; OUT = ACC
    def wld(k):
        r = STG + 8 * (k % 3)
        return [(f"ds_read_b128 v[{r+4*h}:{r+4*h+3}], v{WLD} offset:{LW+wm.lds[lb[k]]*2048+h*1024}", ('w', k)) for h in range(2)]
    def wop(b, needs):
        if b in wm.reg: return wm.r8(b)
        k = lb.index(b); needs.append(('w', k)); return f"v[{STG+8*(k%3)}:{STG+8*(k%3)+7}]"
    a.lab("VO_pre")
    for i in range(10): a(f"v_mov_b64 v[{ACC+2*i}:{ACC+2*i+1}], 0")
    for k in range(3):
        for text, tag in wld(k): a(text)
    lg.waitall()
    for _ in range(OPT.get('vdel', 0)): a("s_sleep 1")
    poll_mem(a, "VO", TMP, st)
    sc = Sched(a, lg); busy = set()
    def put(n, text, tag=None, pre=()):
        while n in busy: n += 1
        busy.add(n); sc.fill(n, text, tag, pre); return n
    order = [(sg, i) for sg in range(8) for i in range(3)] + [(8, 2), (9, 2), (8, 0), (9, 0), (8, 1), (9, 1)]
    use = {}
    for n, (sg, i) in enumerate(order):
        needs = [('a', sg)] if sg >= 2 else []
        w = wop((0, i, sg), needs); use[(0, i, sg)] = n
        sc.add(f"v_smfmac_f32_16x16x64_bf16 v[{ACC+4*i}:{ACC+4*i+3}], v[{areg(sg)}:{areg(sg)+3}], {w}, v{IDX}", needs)
    fc = full_chk(TMP)
    for k, x in enumerate(fc): sc.fill(min(k // 2, 2), x)
    sc.fill(2, "s_cbranch_vccnz VO_pre"); sc.fill(2, "s_waitcnt vmcnt(0)"); sc.fill(2, "s_barrier")
    sc.fill(2, a_read(0), ('a', 2)); sc.fill(2, a_read(1), ('a', 3)); busy.add(2)
    for c in range(2, 8): put(1 + c, a_read(c), ('a', c + 2))
    for k in range(3, 8):
        for text, tag in wld(k): put(max(use[lb[k - 3]], 9), text, tag)
    for c in range(6):
        for h in range(2): sc.fill(3 * (c + 3) + h, f"v_mov_b64 v[{AF+4*c+2*h}:{AF+4*c+2*h+1}], 0")
    sc.emit()
    st(0)
    for t in (2, 0, 1):
        r = ACC + 4 * t
        a(*add2(r), f"v_cvt_pk_bf16_f32 v{TMP+t}, v{r}, v{r+1}")
        a(f"ds_write_b32 v{VW}, v{TMP+t} offset:{t*256}")
    for h in range(4): a(f"v_mov_b64 v[{AF+24+2*h}:{AF+24+2*h+1}], 0")
    lg.waitall(); a("s_barrier")
    for k in range(3):
        for jh in range(2):
            a(f"ds_read_b64_tr_b16 v[{VF+4*k+2*jh}:{VF+4*k+2*jh+1}], v{VR} offset:{k*1024+jh*128}"); lg.issue(('vf', k))
    st(2)
    sc = Sched(a, lg); busy = set(); use = {}
    for t in tord:
        for k in range(3):
            needs = [('vf', k)]
            w = wop((1, t, k), needs)
            use[(1, t, k)] = sc.add(f"v_smfmac_f32_16x16x64_bf16 v[{G(t)}:{G(t)+3}], v[{VF+4*k}:{VF+4*k+3}], {w}, v{IDX}", needs)
    for k in (8, 9):
        for text, tag in wld(k): put(use[lb[k - 3]], text, tag)
    rest = []
    for pos, t in enumerate(tord):
        g = G(t); o = OUT + pos
        seq = add2(g) + [f"v_cvt_pk_bf16_f32 v{o}, v{g}, v{g+1}"]
        stx = f"buffer_store_dword v{o}, v{ZA}, {WS}, s{60+t} offen sc1"
        n = 3 * pos + 6
        for k, x in enumerate(seq):
            if n + k < 30: sc.fill(n + k, x)
            else: rest.append(x)
        if n + 3 < 30: sc.at.setdefault(n + 3, []).insert(0, (stx, None, ()))
        else: rest.append(stx)
    sc.emit()
    st(3)
    for x in rest: a(x)
    st(1)
    st.dump(STG)
    a("s_add_u32 s19, s19, 1")
    ex_base(a, "s24", "s19")
    a("s_cmp_lt_u32 s19, 64", "s_cbranch_scc1 VO_step")
    a("s_endpgm")

def role_red(a, st):
    a.lab("M_red")
    if OPT.get('ct', 0): code_touch(a, 12); a("s_waitcnt vmcnt(0)")
    st.loaded(); dbgt(a, 3, 4)
    UB = 32; ZB = 64; PA = 72; D = 92; T = 96; PM = 4; MO = 5; FA = 6; LA = 7; LR = 12; SEN = 8
    a(f"v_and_b32 v{T}, 1, v1", f"v_cmp_eq_u32 vcc, 0, v{T}", f"v_mov_b32 v{T}, 0x4444", f"v_mov_b32 v{T+1}, 0xeeee", f"v_cndmask_b32 v{IDX}, v{T+1}, v{T}, vcc")
    a(f"v_and_b32 v{T}, 48, v1", f"v_lshlrev_b32 v{T}, 4, v{T}", f"v_and_b32 v{T+1}, 15, v1", f"v_lshlrev_b32 v{T+1}, 3, v{T+1}", f"v_add_u32 v{PM}, v{T}, v{T+1}")
    a(f"v_lshrrev_b32 v{T+1}, 1, v{T+1}", f"v_add_u32 v13, v{T}, v{T+1}")
    a(f"v_lshrrev_b32 v{T}, 4, v1", f"v_mul_u32_u24 v{T}, 144, v{T}", f"v_and_b32 v{T+1}, 15, v1", f"v_lshlrev_b32 v{T+1}, 2, v{T+1}")
    a("s_mul_i32 s30, s16, 576", f"v_add3_u32 v{LA}, v{T}, v{T+1}, s30")
    a(f"v_and_b32 v{T}, 4, v1", f"v_lshrrev_b32 v{T+1}, 4, v1", f"v_add_u32 v{T}, v{T}, v{T+1}", f"v_mul_u32_u24 v{T}, 72, v{T}")
    a(f"v_and_b32 v{T+1}, 3, v1", f"v_lshlrev_b32 v{T+1}, 4, v{T+1}", f"v_and_b32 v{T+2}, 8, v1", f"v_add3_u32 v{LR}, v{T}, v{T+1}, v{T+2}")
    a("s_lshl_b32 s30, s17, 8", "s_add_u32 s30, s30, 20480", f"v_lshlrev_b32 v{MO}, 2, v1", f"v_add_u32 v{MO}, s30, v{MO}"); vmap(a, MO, T)
    for i in range(4): a(f"v_mov_b32 v{SEN+i}, -1")
    a(f"ds_write2_b32 v{LA}, v{SEN}, v{SEN} offset0:0 offset1:18")
    a("s_mov_b32 s42, 0x11111111", "s_mov_b32 s43, 0x11111111")
    a("s_lshl_b32 s38, s17, 14", "s_lshl_b32 s30, s16, 11", "s_add_u32 s38, s38, s30")
    a("s_mul_i32 s39, s17, 205", "s_lshr_b32 s39, s39, 11", "s_lshl_b32 s39, s39, 7", "s_lshl_b32 s30, s16, 5", "s_add_u32 s39, s39, s30", f"s_add_u32 s39, s39, {UF}")
    a("s_lshl_b32 s40, s17, 15", "s_lshl_b32 s30, s16, 13", "s_add_u32 s40, s40, s30", f"s_add_u32 s40, s40, {U}")
    for q in range(5):
        a(f"s_mul_i32 s30, s16, 5", f"s_add_u32 s30, s30, {q}", "s_lshr_b32 s31, s30, 3", "s_lshl_b32 s31, s31, 13", "s_lshl_b32 s30, s30, 10", f"s_add_u32 s{66+q}, s30, s31")
    a(f"v_and_b32 v{FA}, 7, v1", f"v_lshlrev_b32 v{FA}, 2, v{FA}")
    a("s_lshl_b32 s30, s16, 3", "v_add_u32 v14, s30, v1", "v_lshlrev_b32 v14, 7, v14")
    hu_base(a, "s72", HUQ); hu_base(a, "s71", HUR); a("s_lshl_b32 s30, s17, 7", "s_add_u32 s71, s71, s30", "s_cmp_eq_u32 s16, 0", "s_cselect_b32 s71, s71, 0x7ffffff0")
    a("s_mov_b32 s19, 0")
    a("s_waitcnt lgkmcnt(0)", "s_barrier")
    a("v_mov_b32 v24, 0")
    a.lab("R_step")
    a("s_lshl_b32 s32, s19, 9", "s_add_u32 s32, s32, s39", "s_mov_b32 s35, 0")
    a(f"s_mul_i32 s30, s19, {40*32768}", "s_add_u32 s30, s30, s40", "s_add_u32 s31, s30, 4096")
    a("v_cmp_eq_u32 vcc, 0, v24", "s_cbranch_vccz R_ug")
    a.lab("R_uf")
    a(f"buffer_load_dword v24, v{FA}, {WS}, s32 offen sc1", "s_waitcnt vmcnt(0)")
    a("v_cmp_eq_u32 vcc, 0, v24", "s_cbranch_vccz R_ug")
    a("s_sleep 2", "s_add_u32 s35, s35, 1", f"s_cmp_lt_u32 s35, {SPIN}", "s_cbranch_scc1 R_uf"); fail(a)
    a.lab("R_ug")
    for _ in range(OPT.get('ud', 0)): a("s_sleep 1")
    for i in range(8):
        a(f"buffer_load_dwordx4 v[{UB+4*i}:{UB+4*i+3}], v2, {WS}, s{30+i//4} offen offset:{(i%4)*1024} sc1")
    a(f"buffer_load_dword v24, v{FA}, {WS}, s32 offen offset:512 sc1")
    a("s_add_u32 s34, s19, 1")
    z_base(a, "s26", "s34"); a("s_add_u32 s26, s26, s38")
    for i in range(2): a(f"buffer_store_dwordx4 v[{SEN}:{SEN+3}], v2, {WS}, s26 offen offset:{i*1024} sc1")
    a("s_add_u32 s34, s19, 2", "s_cmp_ge_u32 s34, 64", "s_cbranch_scc1 R_noinit", "s_cmp_lg_u32 s16, 0", "s_cbranch_scc1 R_noinit")
    ex_base(a, "s26", "s34")
    a(f"buffer_store_dword v{SEN}, v{MO}, {WS}, s26 offen sc1")
    a.lab("R_noinit")
    z_base(a, "s26", "s19"); a("s_add_u32 s26, s26, s38")
    ex_base(a, "s25", "s19")
    for q in range(5): a(f"s_add_u32 s{60+q}, s25, s{66+q}")
    a("s_add_u32 s34, s19, 1"); ex_base(a, "s24", "s34")
    a("s_mov_b32 s35, 0")
    if st.on: a("s_waitcnt vmcnt(0)")
    st(0)
    for _ in range(OPT.get('rdel', 0)): a("s_sleep 1")
    a(f"v_xor_b32 v{T}, 4096, v{LA}", f"ds_write2_b32 v{T}, v{SEN}, v{SEN} offset0:0 offset1:18")
    a("v_mov_b32 v15, s34", "s_mov_b32 s73, s71")
    if OPT.get('huq', 1): hu_wait(a, "R", 14, "s72", "s34", 16, OPT.get('hd', 4), "0xff")
    st(4)
    def zl():
        for i in range(8): a(f"buffer_load_dword v{ZB+i}, v13, {WS}, s26 offen offset:{(i//4)*1024+[0,2,1,3][i%4]*64} sc1")
    def pl():
        st(3)
        for q in range(4): a(f"buffer_load_dwordx4 v[{PA+4*q}:{PA+4*q+3}], v2, {WS}, s{60+q} offen sc1")
        for h in range(2): a(f"buffer_load_dwordx2 v[{PA+16+2*h}:{PA+17+2*h}], v{PM}, {WS}, s64 offen offset:{128*h} sc1")
        a("s_add_u32 s35, s35, 1", f"v_mov_b64 v[{D}:{D+1}], 0", f"v_mov_b64 v[{D+2}:{D+3}], 0")
    if OPT.get('zlast'):
        pl(); zl()
        a("s_barrier")
        for _ in range(OPT.get('hr', 0)): a("s_nop 7")
        a("s_mov_b64 exec, 1", f"buffer_store_dword v15, v2, {WS}, s73 offen sc1", "s_mov_b64 exec, -1", "s_mov_b32 s73, 0x7ffffff0")
        for q in range(4):
            a(f"s_waitcnt vmcnt({14-q})")
            a(f"v_smfmac_f32_16x16x64_bf16 v[{D}:{D+3}], v[{PA+4*q}:{PA+4*q+3}], v[{UB+8*q}:{UB+8*q+7}], v{IDX}")
        a("s_branch R_last")
    else:
        zl()
        for _ in range(OPT.get('rz', 0)): a("s_nop 7")
        pl()
        a("s_barrier")
        for _ in range(OPT.get('hr', 0)): a("s_nop 7")
        a("s_branch R_go")
    a.lab("R_zp")
    zl()
    a.lab("R_pp")
    pl()
    a(f"s_cmp_ge_u32 s35, {SPIN}", "s_cbranch_scc1 M_fail")
    a.lab("R_go")
    a("s_mov_b64 exec, 1", f"buffer_store_dword v15, v2, {WS}, s73 offen sc1", "s_mov_b64 exec, -1", "s_mov_b32 s73, 0x7ffffff0")
    for q in range(5):
        if q == 4: a.lab("R_last")
        a(f"s_waitcnt vmcnt({(5-q if q < 4 else 0) + 1})")
        a(f"v_smfmac_f32_16x16x64_bf16 v[{D}:{D+3}], v[{PA+4*q}:{PA+4*q+3}], v[{UB+8*q}:{UB+8*q+7}], v{IDX}")
    st(2)
    a(f"v_max3_u32 v{T}, v{ZB}, v{ZB+1}, v{ZB+2}", f"v_max3_u32 v{T+1}, v{ZB+3}, v{ZB+4}, v{ZB+5}", f"v_max3_u32 v{T}, v{T}, v{ZB+6}, v{ZB+7}", f"v_max_u32 v{T}, v{T}, v{T+1}")
    a(f"v_cmp_eq_u32 s[44:45], -1, v{T}")
    a(f"v_add_f32 v{D}, v{D}, v{D+1}", f"v_add_f32 v{D+2}, v{D+2}, v{D+3}")
    a(f"v_cmp_u_f32 vcc, v{D}, v{D+2}")
    a("s_cbranch_vccnz R_nan")
    a.lab("R_ok")
    a(f"ds_write2_b32 v{LA}, v{D}, v{D+2} offset0:0 offset1:18")
    for w in range(4): a(f"ds_read_b64 v[{T+2*w}:{T+2*w+1}], v{LR} offset:{576*w}")
    for _ in range(OPT.get('rwarm', 8)): a(f"v_mov_b32 v{T+12}, 0")
    a("s_waitcnt lgkmcnt(0)")
    a(f"v_pk_add_f32 v[{T+8}:{T+9}], v[{T}:{T+1}], v[{T+2}:{T+3}]", f"v_pk_add_f32 v[{T+10}:{T+11}], v[{T+4}:{T+5}], v[{T+6}:{T+7}]")
    a(f"v_pk_add_f32 v[{T+8}:{T+9}], v[{T+8}:{T+9}], v[{T+10}:{T+11}]")
    a(f"v_cmp_u_f32 vcc, v{T+8}, v{T+9}", f"v_cvt_pk_bf16_f32 v{T+12}, v{T+8}, v{T+9}")
    a("s_cbranch_vccnz R_nan2")
    a.lab("R_pub")
    if OPT.get('rdw', 1):
        a(f"buffer_store_dword v{T+12}, v{MO}, {WS}, s24 offen sc1")
    else:
        for k in range(1, 4): a(f"v_mov_b32_dpp v{T+12+k}, v{T+12} quad_perm:[{k},{k},{k},{k}] row_mask:0xf bank_mask:0xf")
        a("s_mov_b64 exec, s[42:43]")
        a(f"buffer_store_dwordx4 v[{T+12}:{T+15}], v{MO}, {WS}, s24 offen sc1")
        a("s_mov_b64 exec, -1")
    a.lab("R_next")
    st(1)
    if st.on: a("s_waitcnt lgkmcnt(0)", "s_mov_b32 s90, s35")
    st.dump(T + 16)
    a("s_barrier")
    a(f"v_xor_b32 v{LA}, 4096, v{LA}", f"v_xor_b32 v{LR}, 4096, v{LR}")
    if OPT.get('dbgt'):
        a("s_cmp_lg_u32 s19, 0", "s_cbranch_scc1 R_nd"); dbgt(a, 4, T); a.lab("R_nd")
        a("s_cmp_lg_u32 s19, 8", "s_cbranch_scc1 R_nd2"); dbgt(a, 5, T); a.lab("R_nd2")
    a("s_add_u32 s19, s19, 1", "s_cmp_lt_u32 s19, 63", "s_cbranch_scc1 R_step")
    dbgt(a, 6, T)
    a("s_endpgm")
    a.lab("R_nan")
    a("s_cmp_lg_u64 s[44:45], 0", "s_cbranch_scc1 R_zp")
    a(f"v_max3_u32 v{T}, v{PA+3}, v{PA+7}, v{PA+11}", f"v_max3_u32 v{T+1}, v{PA+15}, v{PA+17}, v{PA+19}", f"v_max_u32 v{T}, v{T}, v{T+1}", f"v_cmp_eq_u32 vcc, -1, v{T}")
    a("s_cbranch_vccnz R_pp")
    chk(a, range(PA, PA + 20), T)
    a("s_cbranch_vccnz R_pp")
    a(f"v_min_u32 v{D}, -2, v{D}", f"v_min_u32 v{D+2}, -2, v{D+2}")
    a("s_branch R_ok")
    a.lab("R_nan2")
    chk(a, range(T, T + 8), T + 16)
    a("s_cbranch_vccnz R_next")
    a(f"v_min_u32 v{T+12}, -2, v{T+12}")
    a("s_branch R_pub")

def xn_dma_ops(seg_s="s52", lds_s="s53"):
    return [[f"s_add_u32 m0, {lds_s}, {1024*i}", f"s_add_u32 s54, {seg_s}, {1024*i}", f"buffer_load_dwordx4 v2, {WS}, s54 offen sc1 lds"] for i in range(10)]

def xn_addr(a, seg, ldsbase):
    a(f"s_min_u32 s52, {seg}, 63", "s_mul_i32 s52, s52, 40960", "s_mul_i32 s53, s16, 10240", "s_add_u32 s52, s52, s53", f"s_add_u32 s52, s52, {XN}", f"s_add_u32 s53, s53, {ldsbase}")

def x_first(a):
    xn_addr(a, "s19", LX)
    for op in xn_dma_ops(): a(*op)
    return 10

def x_next(a, lab):
    a("s_mov_b32 s19, s34", "s_cmp_lt_u32 s19, s55", f"s_cbranch_scc1 {lab}")

def x_succ(a, n1):
    a(f"s_cmp_lt_u32 s19, {2*n1-1}", "s_cselect_b32 s34, 2, 1", "s_add_u32 s34, s34, s19")

def x_lims(a, n1):
    a("s_mov_b32 s19, s18", "s_cmp_eq_u32 s18, 0", f"s_cselect_b32 s55, 64, {min(64, 2*n1)}")

class Rec:
    def __init__(s): s.l = []
    def __call__(s, *x): s.l += list(x)

def role_xqk(a, st):
    global XST
    XST = [" sc1", " sc1 nt", " sc0 sc1", ""][OPT.get('xst', 0)]
    blocks = [(t, k) for k in range(10) for t in range(6)]
    wm = Wmap(blocks, {(5, k) for k in range(10)})
    a.lab("M_xqk")
    a("s_cmp_lt_u32 s16, 2", "s_cselect_b32 s30, s40, s42", "s_cselect_b32 s31, s41, s43")
    srd(a, 8, 30, 640 * 12288)
    a("s_mul_i32 s36, s17, 384", "s_and_b32 s30, s16, 1", "s_mul_i32 s30, s30, 192", "s_add_u32 s36, s36, s30")
    pieces = []
    for ks in init.KORD:
        for p in range(2):
            so = lambda dst, o=ks*32*12288+p*96: a(f"s_add_u32 {dst}, s36, {o}")
            pieces.append(('A', "s[8:11]", so, [(3 * p + t, ks // 2) for t in range(3)], ks % 2))
    n1 = OPT.get('n1', 10)
    x_lims(a, n1)
    loader(a, pieces, wm, lambda: x_first(a)); dbgt(a, 2, 4); st.loaded()
    AC = 16; XF = 64; WF = 80; O = 96; XA = 4; WA = 5; XB = 6; ONE = 7
    a("s_mul_i32 s30, s16, 20480", f"v_add_u32 v{WA}, s30, v2", f"v_mov_b32 v{ONE}, 2")
    a(f"s_mov_b32 s38, {QX}", f"s_mov_b32 s30, {KX}", "s_cmp_lt_u32 s16, 2", "s_cselect_b32 s38, s38, s30")
    a("s_and_b32 s30, s16, 1", "s_mul_i32 s30, s30, 3072", "s_add_u32 s38, s38, s30")
    a(f"s_mov_b32 s26, {LX}", "s_mov_b32 s39, 0x7ffffff0", "s_mov_b32 s37, 0x7ffffff0")
    a(f"v_add_u32 v{XA}, {LX}, v2", f"v_add_u32 v{XB}, {LX+40960}, v2")
    a("s_waitcnt vmcnt(0)", "s_barrier")
    lg = Cnt(a, "lgkmcnt", 15)
    def rd(n, xa=XA):
        m, ks = (n // 20) % 2, n % 20
        return [(f"ds_read_b128 v[{XF+4*(n%4)}:{XF+4*(n%4)+3}], v{xa} offset:{(m*20+ks)*1024}", n % 40),
                (f"ds_read_b128 v[{WF+4*(n%4)}:{WF+4*(n%4)+3}], v{WA} offset:{LW+ks*1024}", n % 40)]
    def epi(m, sreg):
        o = []
        for f in range(3):
            d = AC + 4 * (m * 6 + 2 * f); r = O + 4 * f
            o += [f"v_cvt_pk_bf16_f32 v{r+j}, v{d+2*j}, v{d+2*j+1}" for j in range(4)]
            o.append(f"buffer_store_dwordx4 v[{r}:{r+3}], v2, {WS}, {sreg} offen offset:{f*1024}{XST}")
        return o
    for n in range(3):
        for x in rd(n): a(x[0]); lg.issue(x[1])
    a.lab("XQ_seg")
    st(0)
    if st.on: a("s_mov_b32 s76, s19")
    sc = Sched(a, lg)
    for n in range(40):
        m, ks = n // 20, n % 20
        for t in range(6):
            w = wm.r4((t, ks // 2), ks % 2) if t < 5 else f"v[{WF+4*(n%4)}:{WF+4*(n%4)+3}]"
            d = AC + 4 * (m * 6 + t); x = XF + 4 * (n % 4)
            sc.add(f"v_mfma_f32_16x16x32_bf16 v[{d}:{d+3}], {w}, v[{x}:{x+3}], " + ("0" if ks == 0 else f"v[{d}:{d+3}]"), [n])
        for k, x in enumerate(rd(n + 3, XA if n + 3 < 40 else XB)): sc.fill(6 * n + k, *x)
    rec = Rec()
    rec(f"s_xor_b32 s26, s26, {LX ^ (LX+40960)}"); x_succ(rec, n1); xn_addr(rec, "s34", "s26")
    for k, x in enumerate(rec.l): sc.fill(2 + (k // 3) * 6 + k % 3, x)
    for k, x in enumerate(epi(1, "s37")): sc.fill(8 + k, x)
    sc.fill(28, "s_barrier")
    n0 = 6 * OPT.get('xf', 10)
    sc.fill(n0 + 2, "s_waitcnt vmcnt(0)")
    for x in ("s_mov_b64 exec, 1", f"buffer_store_dword v{ONE}, v2, {WS}, s39 offen sc1", "s_mov_b64 exec, -1"): sc.fill(n0 + 3, x)
    for k, op in enumerate(xn_dma_ops()):
        sc.fill(n0 + 6 * k + 8, op[0]); sc.fill(n0 + 6 * k + 8, op[1]); sc.fill(n0 + 6 * k + 9, op[2])
    rec = Rec()
    rec("s_lshl_b32 s30, s19, 5", "s_add_u32 s30, s30, s17", "s_lshl_b32 s39, s30, 4", "s_mul_i32 s30, s30, 12288", "s_add_u32 s36, s30, s38")
    rec("s_lshl_b32 s32, s16, 2", "s_add_u32 s39, s39, s32", f"s_add_u32 s39, s39, {KXF}", "s_add_u32 s37, s36, 6144")
    for k, x in enumerate(rec.l): sc.fill(n0 + 10 + 6 * k, x)
    for k, x in enumerate(epi(0, "s36")): sc.fill(134 + k, x)
    sc.fill(6 * 36 + 3, "s_waitcnt vmcnt(3)"); sc.fill(6 * 36 + 3, "s_barrier")
    sc.fill(6 * 39 + 3, f"v_swap_b32 v{XA}, v{XB}")
    sc.fill(6 * 39 + 2, "s_cmp_lt_u32 s19, 2"); sc.fill(6 * 39 + 2, "s_cselect_b32 s30, 0, s55"); sc.fill(6 * 39 + 4, "s_mov_b32 s19, s34"); sc.fill(6 * 39 + 4, "s_cmp_lt_u32 s19, s30")
    sc.emit()
    if st.on:
        a("s_cselect_b32 s75, 1, 0"); st(1); st.dump(104, "s76"); a("s_cmp_lg_u32 s75, 0")
    a("s_cbranch_scc1 XQ_seg")
    for x in epi(1, "s37"): a(x)
    setflag(a, "s39", ONE)
    a("s_mov_b32 s37, 0x7ffffff0", "s_mov_b32 s39, 0x7ffffff0", "s_cmp_lt_u32 s19, s55", "s_cbranch_scc1 XQ_seg")
    a("s_branch M_second")

def role_xvo(a, st):
    wm = vo_wmap()
    LV = LX + 40960
    a.lab("M_xvo")
    vo_srds(a)
    n1 = 32
    x_lims(a, n1)
    loader(a, vo_pieces(a, False), wm, lambda: x_first(a)); st.loaded()
    VF = 16; AC = 40; G = 64; XF = 80; WF = 96; XA = 4; WA = 5; ONE = 7; VW = 8; VA = 9; CT = 10
    a("s_mul_i32 s30, s16, 20480", f"v_add_u32 v{WA}, s30, v2", f"v_mov_b32 v{ONE}, 2")
    a(f"v_add_u32 v{XA}, {LX}, v2", f"v_add_u32 v{VA}, {LV}, v2")
    a(f"v_and_b32 v{VW}, 0xff, v2", "v_lshrrev_b32 v10, 5, v1", "v_lshlrev_b32 v10, 8, v10", "v_and_b32 v11, 16, v1", "v_lshrrev_b32 v11, 1, v11")
    a(f"v_add3_u32 v{VW}, v{VW}, v10, v11", "s_mul_i32 s30, s16, 1536", f"s_add_u32 s30, s30, {LV}", f"v_add_u32 v{VW}, s30, v{VW}")
    a(f"s_mul_i32 s38, s16, {10*32768}", "s_lshl_b32 s30, s17, 10", "s_add_u32 s38, s38, s30", f"s_add_u32 s38, s38, {U}")
    a("s_lshl_b32 s47, s16, 7", "s_lshl_b32 s30, s17, 2", "s_add_u32 s47, s47, s30", f"s_add_u32 s47, s47, {UF}")
    a("s_mov_b32 s39, 0x7ffffff0", "s_mov_b32 s36, 0x7ffffff0")
    a("s_waitcnt vmcnt(0)", "s_barrier")
    lg = Cnt(a, "lgkmcnt", 15)
    rd = lambda n: (f"ds_read_b128 v[{XF+4*(n%4)}:{XF+4*(n%4)+3}], v{XA} offset:{n*1024}", n)
    def out(t):
        g = G + 8 * (t % 4)
        return [f"v_cvt_pk_bf16_f32 v{g+j}, v{g+2*j}, v{g+2*j+1}" for j in range(4)] + \
               [f"buffer_store_dwordx4 v[{g}:{g+3}], v2, {WS}, s36 offen{XST}", "s_add_u32 s36, s36, 32768"]
    def vout(m):
        o = []
        for t in range(3):
            d = AC + 4 * (m * 3 + t); r = CT + 2 * t
            o += [(f"v_cvt_pk_bf16_f32 v{r}, v{d}, v{d+1}", None), (f"v_cvt_pk_bf16_f32 v{r+1}, v{d+2}, v{d+3}", None),
                  (f"ds_write_b64 v{VW}, v[{r}:{r+1}] offset:{m*6144+t*512}", ('vw', m))]
        return o
    vrd = lambda m, kf: (f"ds_read_b128 v[{VF+4*(m*6+kf)}:{VF+4*(m*6+kf)+3}], v{VA} offset:{(m*6+kf)*1024}", ('v', m, kf))
    units = [(t, (0,)) for t in range(4)] + [(t, (1,)) for t in range(4)] + [(t, (0, 1)) for t in range(4, 10)]
    def wld(u):
        r = WF + 8 * (u % 2)
        return [(f"ds_read_b128 v[{r+4*h}:{r+4*h+3}], v{WA} offset:{LW+wm.lds[(1,units[u][0],2)]*2048+h*1024}", ('w', u)) for h in range(2)]
    for n in range(3): a(rd(n)[0]); lg.issue(n)
    a.lab("XV_seg")
    st(0)
    if st.on: a("s_mov_b32 s76, s19")
    sc = Sched(a, lg)
    for n in range(40):
        m, ks = n // 20, n % 20
        for t in range(3):
            d = AC + 4 * (m * 3 + t); x = XF + 4 * (n % 4)
            sc.add(f"v_mfma_f32_16x16x32_bf16 v[{d}:{d+3}], {wm.r4((0,t,ks//2),ks%2)}, v[{x}:{x+3}], " + ("0" if ks == 0 else f"v[{d}:{d+3}]"), [n])
        if n + 3 < 40: sc.fill(3 * n, *rd(n + 3))
    first = {}; last = {}
    for u, (t, ms) in enumerate(units):
        first[u] = len(sc.mm)
        for kf in range(6):
            for m in ms:
                needs = [('v', m, kf)]
                if kf < 4: w = wm.r4((1, t, kf // 2), kf % 2)
                else: w = f"v[{WF+8*(u%2)+4*(kf%2)}:{WF+8*(u%2)+4*(kf%2)+3}]"; needs.append(('w', u))
                d = G + 8 * (t % 4) + 4 * m; x = VF + 4 * (m * 6 + kf)
                sc.add(f"v_mfma_f32_16x16x32_bf16 v[{d}:{d+3}], v[{x}:{x+3}], {w}, " + ("0" if kf == 0 else f"v[{d}:{d+3}]"), needs)
        last[u] = len(sc.mm) - 1
    for k, x in enumerate(out(9)[:5]): sc.fill(5 + k, x)
    rec = Rec(); x_succ(rec, n1); xn_addr(rec, "s34", LX)
    for k, x in enumerate(rec.l): sc.fill(13 + 3 * (k // 2) + k % 2, x)
    n0 = OPT.get('xfv', 46)
    sc.fill(n0, "s_waitcnt vmcnt(0)")
    for x in ("s_mov_b64 exec, 1", f"buffer_store_dword v{ONE}, v2, {WS}, s39 offen sc1", "s_mov_b64 exec, -1"): sc.fill(n0 + 1, x)
    for k, x in enumerate((f"s_mul_i32 s36, s19, {40*32768}", "s_add_u32 s36, s36, s38", "s_lshl_b32 s39, s19, 9", "s_add_u32 s39, s39, s47")): sc.fill(n0 + 3 + 3 * (k // 2) + k % 2, x)
    for k, x in enumerate(vout(0)): sc.fill(65 + k, *x)
    sc.fill(82, "s_barrier", None, [('vw', 0)])
    for kf in range(6): sc.fill(85 + 3 * kf, *vrd(0, kf))
    for k, x in enumerate(wld(0) + wld(1)): sc.fill(111 + k, *x)
    for k, x in enumerate(vout(1)): sc.fill(123 + (2 * k) // 3, *x)
    sc.fill(132, "s_barrier", None, [('vw', 1)])
    for kf in range(6): sc.fill(133 + kf + (kf >= 4) * 2, *vrd(1, kf))
    for u in range(2, len(units)):
        for k, x in enumerate(wld(u)): sc.at.setdefault(last[u - 2] + k, []).insert(0, (x[0], x[1], ()))
    for u in range(4, len(units) - 1):
        for k, x in enumerate(out(units[u][0])): sc.fill(last[u] + 5 + k, x)
    dm = xn_dma_ops()
    for k, op in enumerate(dm):
        n = (141, 142, 145, 146, 147, 148, 151, 152, 153, 157)[k]
        for x in op: sc.at.setdefault(n, []).insert(op.index(x), (x, None, ()))
    sc.fill(230, "s_waitcnt vmcnt(8)"); sc.fill(230, "s_barrier")
    for n in range(3): sc.at.setdefault(231 + n, []).insert(0, (rd(n)[0], n, ()))
    sc.fill(238, "s_cmp_lt_u32 s19, 2"); sc.fill(238, "s_cselect_b32 s30, 0, s55"); sc.fill(239, "s_mov_b32 s19, s34"); sc.fill(239, "s_cmp_lt_u32 s19, s30")
    sc.emit()
    if st.on:
        a("s_cselect_b32 s75, 1, 0"); st(1); st.dump(WF, "s76"); a("s_cmp_lg_u32 s75, 0")
    a("s_cbranch_scc1 XV_seg")
    for x in out(9)[:5]: a(x)
    setflag(a, "s39", ONE)
    a("s_mov_b32 s36, 0x7ffffff0", "s_mov_b32 s39, 0x7ffffff0", "s_cmp_lt_u32 s19, s55", "s_cbranch_scc1 XV_seg")
    a("s_branch M_second")

def role_table(mp):
    per = [[] for _ in range(8)]
    QKs = [(1 << 16) | h for h in range(32)]; VOs = [(2 << 16) | h for h in range(32)]; Rs = [(3 << 16) | t for t in range(40)]
    if mp == 0: per[0] = QKs[:16] + VOs[:16]; per[1] = QKs[16:] + VOs[16:]; per[2] = Rs[:20]; per[3] = Rs[20:]
    if mp == 1: per[0] = QKs; per[1] = VOs; per[2] = Rs[:20]; per[3] = Rs[20:]
    if mp == 2: per[0] = QKs[:16] + Rs[:10]; per[1] = QKs[16:] + Rs[10:20]; per[2] = VOs[:16] + Rs[20:30]; per[3] = VOs[16:] + Rs[30:]
    if mp == 3:
        for x in range(4): per[x] = QKs[8*x:8*x+8] + VOs[8*x:8*x+8] + Rs[10*x:10*x+10]
    if mp == 4: per[0] = QKs[:16] + VOs[:4]; per[1] = QKs[16:] + VOs[4:8]; per[2] = VOs[8:] + Rs[:8]; per[3] = Rs[8:]
    if mp == 5: per[0] = QKs[:16] + VOs[:4]; per[1] = QKs[16:] + VOs[4:8]; per[2] = VOs[8:20] + Rs[:20]; per[3] = VOs[20:] + Rs[20:]
    if mp == 6: per[0] = QKs[:11] + VOs[:11]; per[1] = QKs[11:22] + VOs[11:22]; per[2] = QKs[22:] + VOs[22:] + Rs[:8]; per[3] = Rs[8:]
    for x in range(4):
        per[4 + x] = [((4 + k // 2) << 16) | ((k % 2) << 8) | ((8 * x + h + 8 * (k // 2) * OPT.get('xoff', 1)) % 32) for k in range(4) for h in range(8)]
    if OPT.get('xmap'):
        for x in range(4): per[4 + x] = [((4 + x // 2) << 16) | (k << 8) | (16 * (x % 2) + h) for k in range(2) for h in range(16)]
    tb = [0] * 256
    for x in range(8):
        assert len(per[x]) <= 32
        for r, e in enumerate(per[x]): tb[r * 8 + x] = e
    return tb

def second_table(tb):
    def ent(kind, part, start, stride, end=64): return (kind << 28) | (end << 21) | (stride << 14) | (start << 7) | part
    def groups(kind, nparts, n): return [[ent(kind, p, g, n) for p in range(nparts)] for g in range(n)]
    t2 = [0] * 256
    spare = [i for i in range(256) if tb[i] == 0]
    spare.sort(key=lambda i: (i % 8, i // 8))
    na = OPT.get('ga', 3)
    for i, e in zip(spare, [e for g in groups(1, 8, na) for e in g]): t2[i] = e
    K = OPT.get('K', 62)
    def grp(kind, nparts, n, lo, hi): return [[ent(kind, p, lo + g, n, hi) for p in range(nparts)] for g in range(n)]
    sel = lambda kind, reps: [i for x in range(4) for i in range(256) if i % 8 == 4 + x and (tb[i] >> 16) == kind and ((tb[i] >> 8) & 1) in reps]
    def put(cus, gs):
        es = [e for g in gs for e in g]
        assert len(es) <= len(cus)
        for i, e in zip(cus, es): t2[i] = e
    KB_ = OPT.get('kb', 62)
    put(sel(4, (1,)), grp(2, 10, 3, 0, KB_))
    xv = [[i for i in sel(5, (0, 1)) if i % 8 == 4 + x] for x in range(4)]
    KD = OPT.get('kd', 63)
    C_, D_ = grp(3, 12, 3, 0, 64), grp(4, 10, 2, 0, KD)
    for x in range(3): put(xv[x][:12], [C_[x]])
    put(xv[3][:10], [D_[0]]); put(xv[3][10:] + [i for x in range(3) for i in xv[x][12:]], [D_[1]])
    put(sel(4, (0,)), grp(2, 10, 2, KB_, 64) + grp(4, 10, 1, KD, 64))
    return t2

def gen_mega(a, name, stamps=False):
    st = St(a, stamps)
    kstart(a, name)
    a("s_cmp_ge_u32 s2, 256", "s_cbranch_scc1 M_done")
    a(f"s_load_dwordx8 s[40:47], s[0:1], {A_WQ}", f"s_load_dwordx4 s[48:51], s[0:1], {A_DBG}")
    a("v_and_b32 v1, 63, v0", "v_lshrrev_b32 v2, 6, v0", "v_readfirstlane_b32 s16, v2", "v_lshlrev_b32 v2, 4, v1")
    a("s_getreg_b32 s3, hwreg(HW_REG_XCC_ID)", "s_and_b32 s3, s3, 7", "s_and_b32 s30, s2, 0xf8", "s_or_b32 s3, s3, s30", "s_movk_i32 s63, 128")
    a("s_waitcnt lgkmcnt(0)")
    srd_ws(a, 4, 50)
    st.init()
    if OPT.get('dbgt'): a("s_memrealtime s[98:99]")
    a.lab("M_lookup")
    a("s_getpc_b64 s[30:31]")
    a.lab("M_pc")
    a("s_lshl_b32 s32, s3, 3", "s_add_u32 s32, s32, M_table-M_pc", "s_load_dwordx2 s[22:23], s[30:31], s32", "s_waitcnt lgkmcnt(0)")
    if OPT.get('ldonly'):
        a("s_bfe_u32 s61, s22, 0x80010", "s_bfe_u32 s62, s22, 0x80008", "s_add_u32 s62, s62, 1", "s_cmp_ge_u32 s61, 4", "s_cselect_b32 s62, s62, 0")
        a(f"s_lshr_b32 s62, {OPT['ldonly']}, s62", "s_bitcmp0_b32 s62, 0", "s_cbranch_scc1 M_done", "s_cmp_eq_u32 s61, 3", "s_cbranch_scc1 M_done", "s_cmp_eq_u32 s61, 0", "s_cbranch_scc1 M_done", "s_branch M_roles")
    a("s_lshr_b32 s60, s22, 24", "s_cmp_lg_u32 s60, 0", "s_cbranch_scc0 M_claim", "s_sub_u32 s60, s60, 1", "s_branch I_start")
    a.lab("M_claim")
    init.claim(a, "M_roles")
    a.lab("M_roles")
    a("s_and_b32 s17, s22, 0xff", "s_bfe_u32 s18, s22, 0x80008", "s_bfe_u32 s22, s22, 0x80010")
    if OPT.get('solo'): a("s_cmp_ge_u32 s22, 3", "s_cbranch_scc1 M_done")
    if OPT.get('solo') == 2: a("s_cmp_lg_u32 s17, 0", "s_cbranch_scc1 M_done")
    for k, nm in ((1, "M_qk"), (2, "M_vo"), (3, "M_red"), (4, "M_xqk"), (5, "M_xvo")):
        a(f"s_cmp_eq_u32 s22, {k}", f"s_cbranch_scc1 {nm}")
    a.lab("M_second")
    dbgt(a, 7, 4)
    a("s_waitcnt vmcnt(0) lgkmcnt(0)", "s_barrier")
    a("s_and_b32 s17, s23, 0x7f", "s_bfe_u32 s19, s23, 0x70007", "s_bfe_u32 s18, s23, 0x7000e", "s_bfe_u32 s59, s23, 0x70015", "s_lshr_b32 s22, s23, 28")
    if not OPT.get('nopost'):
        for k, nm in ((1, "P_a"), (2, "P_b"), (3, "P_c"), (4, "P_d")):
            a(f"s_cmp_eq_u32 s22, {k}", f"s_cbranch_scc1 {nm}")
    a("s_endpgm")
    a.lab("M_again")
    a("s_cmp_lg_u32 s63, 128", "s_cbranch_scc1 M_fail")
    a("s_mov_b32 s3, s2", "s_movk_i32 s63, 192", "s_barrier", "s_branch M_lookup")
    a.lab("M_fail")
    a("s_mov_b64 exec, 1", "v_mov_b32 v3, 0", "v_mov_b32 v4, 0xdead", "global_store_dword v3, v4, s[48:49]")
    a.lab("M_done")
    a("s_endpgm")
    role_red(a, st); role_qk(a, st); role_vo(a, st); role_xqk(a, st); role_xvo(a, st)
    init.gen_init(a, 64, OPT, waitflags)
    import roles2
    roles2.role_a(a, st); roles2.role_b(a, st); roles2.role_c(a, st); roles2.role_d(a, st)
    a.raw(".p2align 3\n.type M_table,@object\nM_table:")
    tb = role_table(OPT.get('map', 0)); t2 = second_table(tb)
    idle = [i for i in range(256) if (tb[i] >> 16) == 3] + [i for i in range(256) if (tb[i] >> 16) == 0]
    assert len(idle) == 64
    tb = list(tb)
    for k, i in enumerate(idle): tb[i] |= (k + 1) << 24
    for i in range(0, 256, 4): a.raw("  .long " + ", ".join(f"{hex(x)}, {hex(y)}" for x, y in zip(tb[i:i+4], t2[i:i+4])))
    return kdesc(name, 512, 256)
```

```python
from common import *
from mega import dbgt, earlyflag, setneed, hu_base, WS, OPT, z_base, setflag, waitflags, chk, Sched, SPIN
from post import half_frag_off, row_off, resid

def nxt(a, lab):
    a("s_add_u32 s19, s19, s18", "s_cmp_lt_u32 s19, s59", f"s_cbranch_scc1 {lab}")
    dbgt(a, 8 if lab == "PA_seg" else 9, 4)
    a("s_endpgm")

def dma(a, n, soff, lds):
    for i in range(n):
        a(f"s_add_u32 m0, {lds}, {1024*i}", f"buffer_load_dwordx4 v2, {WS}, {soff} offen sc1 lds", f"s_add_u32 {soff}, {soff}, 1024")

def role_a(a, st):
    a.lab("P_a")
    Q = 16; K = 64; M = 112; T = 136; E = 160
    a("s_lshl_b32 s17, s17, 2", "s_add_u32 s17, s17, s16")
    a("v_and_b32 v3, 15, v1", "v_lshrrev_b32 v4, 4, v1", "v_lshlrev_b32 v4, 2, v4", "v_sub_u32 v3, v3, v4")
    for r in range(4): a(f"v_cmp_le_i32 s[{60+2*r}:{61+2*r}], {r}, v3")
    a("s_mov_b32 s38, 0x3d93cd3a", "s_mov_b32 s39, 0x3fb8aa3b", "v_mov_b32 v5, 0xce6e6b28")
    a("v_and_b32 v6, 0xff, v2", "v_and_b32 v7, 16, v1", "v_lshrrev_b32 v7, 1, v7", "v_add_u32 v6, v6, v7")
    a("v_and_b32 v9, 3, v1", "v_lshlrev_b32 v9, 2, v9", "v_mov_b32 v14, 0")
    a.lab("PA_seg")
    a("s_lshl_b32 s40, s19, 5", "s_add_u32 s40, s40, s17")
    a("s_lshl_b32 s30, s40, 4", f"s_add_u32 s30, s30, {KXF}")
    waitflags(a, "s30", 9, 8)
    a("s_mul_i32 s41, s40, 12288", f"s_add_u32 s42, s41, {KX}", f"s_add_u32 s41, s41, {QX}", "s_mul_i32 s43, s40, 6144", f"s_add_u32 s43, s43, {KM}")
    def ld(base, s, n):
        for i in range(n):
            a(f"buffer_load_dwordx4 v[{base+4*i}:{base+4*i+3}], v2, {WS}, s{s} offen offset:{(i%4)*1024} sc1")
            if i % 4 == 3: a(f"s_add_u32 s{s}, s{s}, 4096")
    ld(Q, 41, 12); ld(K, 42, 12)
    a("s_mul_i32 s44, s19, 81920", f"s_add_u32 s44, s44, {PX}", "s_lshl_b32 s45, s17, 10", "s_add_u32 s45, s45, s44")
    a("s_lshl_b32 s46, s17, 8", "s_add_u32 s46, s46, s44", "s_add_u32 s46, s46, 32768")
    a("s_lshl_b32 s47, s40, 7", f"s_add_u32 s30, s47, {KMF}", f"s_add_u32 s47, s47, {PXF}")
    a("s_waitcnt vmcnt(0)")
    def mm(t, A, m, f):
        d = T + 4 * t
        a(f"v_mfma_f32_16x16x32_bf16 v[{d}:{d+3}], v[{A}:{A+3}], v[{Q+4*(6*m+f)}:{Q+4*(6*m+f)+3}], " + ("0" if f == 0 else f"v[{d}:{d+3}]"))
    def rnd(lo, hi):
        for i in range(lo, hi, 2):
            r = T + i
            a(f"v_cvt_pk_bf16_f32 v8, v{r}, v{r+1}", f"v_lshlrev_b32 v{r}, 16, v8", f"v_and_b32 v{r+1}, 0xffff0000, v8")
            a(f"v_mul_f32 v{r}, s38, v{r}", f"v_mul_f32 v{r+1}, s38, v{r+1}")
            a(f"v_cvt_pk_bf16_f32 v8, v{r}, v{r+1}", f"v_lshlrev_b32 v{r}, 16, v8", f"v_and_b32 v{r+1}, 0xffff0000, v8")
    for f in range(6):
        mm(0, K + 4 * f, 0, f); mm(1, K + 4 * f, 1, f); mm(2, K + 24 + 4 * f, 1, f)
    rnd(0, 12)
    for t in (0, 2):
        for r in range(4): a(f"v_cndmask_b32 v{T+4*t+r}, v5, v{T+4*t+r}, s[{60+2*r}:{61+2*r}]")
    setneed(a)
    a.lab("PA_km")
    waitflags(a, "s30", 14, 8, "s58")
    st(0)
    a("s_mov_b32 s41, s43")
    ld(M, 41, 6)
    for f in range(6):
        a(f"s_waitcnt vmcnt({5-f})")
        mm(3, M + 4 * f, 0, f); mm(4, M + 4 * f, 1, f)
    a(f"v_add_f32 v8, v{T+12}, v{T+13}", f"v_add_f32 v15, v{T+14}, v{T+15}", "v_cmp_u_f32 vcc, v8, v15", "s_cbranch_vccz PA_ok")
    a("s_cmp_eq_u32 s58, 2", "s_mov_b32 s58, 2", "s_cbranch_scc0 PA_km")
    a.lab("PA_ok")
    st(2); st(3)
    rnd(12, 20)
    sets = [[T + 4 * t + r for t in tl for r in range(4)] for tl in ((0, 3), (1, 2, 4))]
    MX = [10, 11]; SM = [12, 13]; TT = [176, 177]
    for m, rs in enumerate(sets):
        a(f"v_max3_f32 v{MX[m]}, v{rs[0]}, v{rs[1]}, v{rs[2]}")
        for i in range(3, len(rs) - 1, 2): a(f"v_max3_f32 v{MX[m]}, v{MX[m]}, v{rs[i]}, v{rs[i+1]}")
        a(f"v_max_f32 v{MX[m]}, v{MX[m]}, v{rs[-1]}")
    def xs2(op, V):
        for sw in ("v_permlane16_swap_b32", "v_permlane32_swap_b32"):
            for m in range(2): a(f"v_mov_b32 v{TT[m]}, v{V[m]}")
            for m in range(2): a(f"{sw} v{V[m]}, v{TT[m]}")
            for m in range(2): a(f"{op} v{V[m]}, v{V[m]}, v{TT[m]}")
    xs2("v_max_f32", MX)
    for m, rs in enumerate(sets):
        a(f"v_mul_f32 v{MX[m]}, s39, v{MX[m]}")
        for r in rs: a(f"v_fma_f32 v{r}, v{r}, s39, -v{MX[m]}")
        for r in rs: a(f"v_exp_f32 v{r}, v{r}")
        s_ = SM[m]
        a(f"v_add_f32 v{s_}, v{rs[-4]}, v{rs[-3]}", f"v_add_f32 v{TT[m]}, v{rs[-2]}, v{rs[-1]}", f"v_add_f32 v{s_}, v{s_}, v{TT[m]}", f"v_mul_f32 v{s_}, 0.5, v{s_}")
        for r in rs[:-4]: a(f"v_add_f32 v{s_}, v{s_}, v{r}")
    xs2("v_add_f32", SM)
    for m, rs in enumerate(sets):
        a(f"v_rcp_f32 v{SM[m]}, v{SM[m]}")
        for r in rs: a(f"v_mul_f32 v{r}, v{r}, v{SM[m]}")
        o = E + 8 * m
        a(f"v_cvt_pk_bf16_f32 v{o}, v{rs[0]}, v{rs[1]}", f"v_cvt_pk_bf16_f32 v{o+1}, v{rs[2]}, v{rs[3]}")
        if m == 0: a(f"v_mov_b32 v{o+2}, 0", f"v_mov_b32 v{o+3}, 0")
        else: a(f"v_cvt_pk_bf16_f32 v{o+2}, v{rs[4]}, v{rs[5]}", f"v_cvt_pk_bf16_f32 v{o+3}, v{rs[6]}, v{rs[7]}")
        a(f"v_cvt_pk_bf16_f32 v{o+4}, v{rs[-4]}, v{rs[-3]}", f"v_cvt_pk_bf16_f32 v{o+5}, v{rs[-2]}, v{rs[-1]}")
        a(f"buffer_store_dwordx4 v[{o}:{o+3}], v2, {WS}, s45 offen sc1")
        a("s_mov_b32 exec_hi, 0", f"buffer_store_dwordx2 v[{o+4}:{o+5}], v6, {WS}, s46 offen sc1", "s_mov_b32 exec_hi, -1")
        if m == 0: a("s_add_u32 s45, s45, 40960", "s_add_u32 s46, s46, 40960")
    st(4)
    earlyflag(a, "s47", 8)
    setflag(a, "s47", 8)
    st(1); st.dump(180, second=True)
    nxt(a, "PA_seg")

def ksum(a, D, ntile, LW_, LR_, T):
    for t in range(4):
        for m in range(2):
            a(f"ds_write_b128 v{LW_}, v[{D+8*t+4*m}:{D+8*t+4*m+3}] offset:{(2*t+m)*4096}")
    a("s_waitcnt lgkmcnt(0)", "s_barrier")
    for m in range(2):
        for w in range(4):
            r = D + 16 * m + 4 * w
            a(f"ds_read_b128 v[{r}:{r+3}], v{LR_} offset:{m*4096+w*1024}")
    a("s_waitcnt lgkmcnt(0)")
    for m in range(2):
        for r in range(4):
            b = D + 16 * m + r
            a(f"v_add_f32 v{b}, v{b}, v{b+4}", f"v_add_f32 v{b+8}, v{b+8}, v{b+12}", f"v_add_f32 v{T+4*m+r}, v{b}, v{b+8}")

def ksum_setup(a, LW_, LR_):
    a("s_lshl_b32 s30, s16, 10", f"v_add_u32 v{LW_}, s30, v2", "s_lshl_b32 s30, s16, 13", f"v_add_u32 v{LR_}, s30, v2")

def role_b(a, st):
    a.lab("P_b")
    a(f"s_load_dwordx2 s[40:41], s[0:1], {A_X}", "s_waitcnt lgkmcnt(0)")
    srd(a, 8, 40, 2048 * 1280)
    PF = 64; ZB = 144; D = 32; T = 16; R = 24; O = 28; LW_ = 10; LR_ = 11
    ksum_setup(a, LW_, LR_)
    a("v_and_b32 v5, 48, v1", "v_lshlrev_b32 v5, 4, v5", "v_and_b32 v6, 15, v1", "v_lshlrev_b32 v6, 2, v6", "v_add_u32 v5, v5, v6")
    row_off(a, 6, 7); half_frag_off(a, 7, 8)
    a("s_lshl_b32 s42, s17, 2", "s_mul_i32 s30, s42, 205", "s_lshr_b32 s30, s30, 11", "s_add_u32 s31, s42, 3", "s_mul_i32 s31, s31, 205", "s_lshr_b32 s31, s31, 11")
    a("s_sub_u32 s31, s31, s30", "s_lshl_b32 s31, s31, 4", "s_lshl_b32 s43, s30, 7", "s_lshl_b32 s30, s16, 5", "s_add_u32 s43, s43, s30", f"s_add_u32 s43, s43, {UF}")
    a("v_and_b32 v9, 7, v1", "v_lshlrev_b32 v9, 2, v9", "v_and_b32 v12, 8, v1", "v_mul_u32_u24 v12, s31, v12", "v_add_u32 v12, v12, v9")
    a("v_lshlrev_b32 v9, 5, v9", "s_lshl_b32 s44, s16, 10", f"s_add_u32 s44, s44, {PXF}")
    a("s_lshl_b32 s45, s42, 15", "s_lshl_b32 s30, s16, 13", "s_add_u32 s45, s45, s30", f"s_add_u32 s45, s45, {U}")
    a("s_lshl_b32 s46, s42, 14", "s_lshl_b32 s30, s16, 11", "s_add_u32 s46, s46, s30")
    a("s_add_u32 s42, s42, s16")
    FU = 13; FP = 14; LZ = 65536
    a("s_lshl_b32 s47, s16, 13", f"s_add_u32 s47, s47, {LZ}", "v_add_u32 v5, s47, v5")
    def uload(seg):
        a(f"s_mul_i32 s30, {seg}, {40*32768}", "s_add_u32 s30, s30, s45")
        for t in range(4):
            for i in range(8):
                r = 32 * t + 4 * i
                a(f"buffer_load_dwordx4 a[{r}:{r+3}], v2, {WS}, s30 offen offset:{(i%4)*1024} sc1")
                if i == 3: a("s_add_u32 s30, s30, 4096")
            a(f"s_add_u32 s30, s30, {32768-4096}")
    def uwait(seg):
        a(f"s_lshl_b32 s30, {seg}, 9", "s_add_u32 s30, s30, s43")
        waitflags(a, "s30", 12, 8)
    def zload(seg):
        z_base(a, "s26", seg); a("s_add_u32 s26, s26, s46")
        for t in range(4):
            a(f"s_add_u32 m0, s47, {2048*t}")
            for i in range(2): a(f"buffer_load_dwordx4 v2, {WS}, s26 offen offset:{i*1024} sc1 lds")
            a("s_add_u32 s26, s26, 16384")
    def zget(tag, young):
        a("s_mov_b32 s35, 0", f"s_waitcnt vmcnt({young})")
        a.lab(f"PB_z{tag}")
        for q in range(8):
            a(f"v_add_u32 v15, {1024*q}, v5")
            for h in range(2): a(f"ds_read2_b32 v[{ZB+4*q+2*h}:{ZB+4*q+2*h+1}], v15 offset0:{32*h} offset1:{32*h+16}")
        a("s_waitcnt lgkmcnt(0)")
        chk(a, range(ZB, ZB + 32), 176)
        a(f"s_cbranch_vccz PB_zok{tag}")
        zload("s19")
        a("s_waitcnt vmcnt(0)", "s_add_u32 s35, s35, 1", f"s_cmp_lt_u32 s35, {SPIN}", f"s_cbranch_scc1 PB_z{tag}", "s_branch M_fail")
        a.lab(f"PB_zok{tag}")
    def xload(seg):
        a(f"s_mul_i32 s30, {seg}, 40960", "s_lshl_b32 s31, s42, 5", "s_add_u32 s30, s30, s31", "s_add_u32 s31, s30, 20480")
        for m in range(2): a(f"buffer_load_dwordx2 v[{R+2*m}:{R+2*m+1}], v6, s[8:11], s{30+m} offen")
    def pload(seg):
        a(f"s_mul_i32 s30, {seg}, 81920", f"s_add_u32 s30, s30, {PX}", "s_lshl_b32 s31, s16, 11", "s_add_u32 s32, s30, s31", "s_add_u32 s32, s32, 32768")
        a("s_lshl_b32 s31, s16, 13", "s_add_u32 s30, s30, s31", "s_add_u32 s31, s30, 40960", "s_add_u32 s33, s32, 40960")
        for i in range(8):
            for m in range(2):
                r = PF + 8 * i + 4 * m
                a(f"buffer_load_dwordx4 v[{r}:{r+3}], v2, {WS}, s{30+m} offen offset:{(i%4)*1024} sc1")
            if i == 3: a("s_add_u32 s30, s30, 4096", "s_add_u32 s31, s31, 4096")
        for i in range(2):
            for m in range(2):
                r = PF + 64 + 8 * i + 4 * m
                a(f"buffer_load_dwordx4 v[{r}:{r+3}], v2, {WS}, s{32+m} offen offset:{i*1024} sc1")
    def xmm(young, ask):
        for i in range(8):
            a(f"s_waitcnt vmcnt({young+18-2*i+(2 if ask and i else 0)})")
            for t in range(4):
                for m in range(2):
                    d = D + 8 * t + 4 * m; u = 32 * t + 4 * i; p = PF + 8 * i + 4 * m
                    a(f"v_mfma_f32_16x16x32_bf16 v[{d}:{d+3}], a[{u}:{u+3}], v[{p}:{p+3}], " + ("0" if i == 0 else f"v[{d}:{d+3}]"))
            if ask and i == 0:
                a("s_min_u32 s33, s34, 63", "s_lshl_b32 s30, s33, 9", "s_add_u32 s30, s30, s43", f"buffer_load_dword v{FU}, v12, {WS}, s30 offen sc1")
                a("s_lshl_b32 s30, s33, 12", "s_add_u32 s30, s30, s44", f"buffer_load_dword v{FP}, v9, {WS}, s30 offen sc1")
    uwait("s19"); uload("s19")
    a.lab("PB_seg")
    setneed(a)
    a("s_cmp_eq_u32 s58, 2", "s_cbranch_scc1 PB_n")
    hu_base(a, "s30", HUQ)
    a("s_add_u32 s34, s19, 1")
    waitflags(a, "s30", 9, 8, "s34")
    xload("s19"); zload("s19"); zget("e", 0)
    a("s_lshl_b32 s30, s19, 12", "s_add_u32 s30, s30, s44")
    waitflags(a, "s30", 9, 8, "s58")
    st(0)
    pload("s19"); xmm(0, False)
    a("s_add_u32 s34, s19, s18", f"v_mov_b32 v{FU}, 0", "s_waitcnt vmcnt(0)", "s_branch PB_m")
    a.lab("PB_n")
    a("s_lshl_b32 s30, s19, 12", "s_add_u32 s30, s30, s44")
    waitflags(a, "s30", 9, 8, "s58")
    st(0)
    pload("s19"); xload("s19"); zload("s19")
    a.lab("PB_have")
    a("s_add_u32 s34, s19, s18")
    xmm(10, True)
    zget("n", 0)
    a.lab("PB_m")
    st(2)
    a("s_lshl_b32 s57, s19, 13", "s_lshl_b32 s31, s42, 7", "s_add_u32 s57, s57, s31", f"s_add_u32 s57, s57, {HFL}")
    for i in range(2):
        for t in range(4):
            for m in range(2):
                d = D + 8 * t + 4 * m; z = ZB + 8 * t + 4 * i; p = PF + 64 + 8 * i + 4 * m
                a(f"v_mfma_f32_16x16x32_bf16 v[{d}:{d+3}], v[{z}:{z+3}], v[{p}:{p+3}], v[{d}:{d+3}]")
    if OPT.get('lb', 1) == 2: earlyflag(a, "s57", 8)
    a(f"v_cmp_u_f32 vcc, v{D}, v{D+4}", "s_cbranch_vccz PB_ok")
    a("s_cmp_eq_u32 s58, 2", "s_mov_b32 s58, 2", "s_cbranch_scc0 PB_n")
    a.lab("PB_ok")
    st(3)
    ksum(a, D, 4, LW_, LR_, T)
    if OPT.get('lb', 1) == 1: earlyflag(a, "s57", 8)
    a("s_mul_i32 s30, s19, 40960", "s_lshl_b32 s31, s42, 9", "s_add_u32 s30, s30, s31", f"s_add_u32 s30, s30, {HB}", "s_add_u32 s31, s30, 20480")
    for m in range(2):
        resid(a, T + 4 * m, R + 2 * m, O + 2 * m)
        a(f"buffer_store_dwordx2 v[{O+2*m}:{O+2*m+1}], v7, {WS}, s{30+m} offen sc1")
    if OPT.get('lb', 1) == 0: earlyflag(a, "s57", 8)
    st(4)
    a(f"v_xor_b32 v{LW_}, 0x8000, v{LW_}", f"v_xor_b32 v{LR_}, 0x8000, v{LR_}")
    st(1); st.dump(180, second=True)
    a("s_mov_b32 s19, s34", f"v_cmp_eq_u32 vcc, 0, v{FU}", "s_cmp_ge_u32 s19, s59", "s_cbranch_scc1 PB_end", "s_cbranch_vccnz PB_slow")
    uload("s19")
    setflag(a, "s57", 8, 32)
    a(f"v_cmp_gt_u32 vcc, 2, v{FP}", "s_cbranch_vccnz PB_seg")
    st(0)
    a("s_mov_b32 s58, 2")
    pload("s19"); xload("s19"); zload("s19")
    a("s_branch PB_have")
    a.lab("PB_slow")
    setflag(a, "s57", 8)
    uwait("s19"); uload("s19")
    a("s_branch PB_seg")
    a.lab("PB_end")
    setflag(a, "s57", 8)
    a("s_endpgm")

def role_c(a, st):
    a.lab("P_c")
    a("v_max_u32 v4, 40, v1", "v_lshlrev_b32 v4, 7, v4", f"s_mov_b32 s30, {WTF}")
    waitflags(a, "s30", 4, 8)
    a(f"s_load_dwordx2 s[40:41], s[0:1], {A_B1}", "s_waitcnt lgkmcnt(0)")
    srd(a, 8, 40, 3072)
    XF = 64; D = 48; B = 16; CS = 24; T = 32; S1 = 40; O = 96; G = 120; XA = 44; FA = 4; SA = 5; SR = 6; FV = 7; ONES = 12
    LST = 49152
    a("s_lshl_b32 s17, s17, 2", "s_add_u32 s17, s17, s16")
    a("v_lshrrev_b32 v7, 4, v1", "v_lshlrev_b32 v7, 3, v7", "s_lshl_b32 s30, s17, 6")
    a(f"buffer_load_dwordx2 v[{T}:{T+1}], v7, s[8:11], s30 offen", f"buffer_load_dwordx2 v[{T+2}:{T+3}], v7, s[8:11], s30 offen offset:32")
    a("s_mul_i32 s32, s17, 40960", f"s_add_u32 s32, s32, {W1F}")
    for q in range(4):
        a(f"s_add_u32 s{60+q}, s16, {q}", f"s_and_b32 s{60+q}, s{60+q}, 3", f"s_mul_i32 s{60+q}, s{60+q}, 5120")
        a(f"s_add_u32 s30, s32, s{60+q}", "s_add_u32 s31, s30, 20480")
        for i in range(5):
            ks = 5 * q + i
            if i == 4: a("s_add_u32 s30, s30, 4096", "s_add_u32 s31, s31, 4096")
            for t in range(2): a(f"buffer_load_dwordx4 a[{8*ks+4*t}:{8*ks+4*t+3}], v2, {WS}, s{30+t} offen offset:{(i%4)*1024} sc1")
        a(f"v_add_u32 v{XA+q}, s{60+q}, v2")
    a("s_mov_b32 s39, 0x3fb8aa3b", "s_mov_b32 s38, 0x422c0000", "s_mul_i32 s26, s16, 10240", "s_mov_b32 s47, 0x7ffffff0")
    for i in range(4): a(f"v_mov_b32 v{ONES+i}, 0x3f803f80")
    a(f"v_min_u32 v{FA}, 39, v1", f"v_lshlrev_b32 v{FA}, 7, v{FA}")
    a(f"v_and_b32 v{SR}, 0xff, v2", f"v_add_u32 v{SR}, {LST}, v{SR}", "s_lshl_b32 s30, s16, 8", f"v_add_u32 v{SA}, s30, v{SR}")
    a("s_mov_b32 s64, 0xaaaaaaaa", "s_mov_b32 s65, 0xaaaaaaaa", "s_mov_b32 s66, 0xcccccccc", "s_mov_b32 s67, 0xcccccccc")
    a("s_mov_b32 s68, 0x00f0000f", "s_mov_b32 s69, 0xf0000f00")
    a("s_waitcnt vmcnt(0)")
    for i in range(4): a(f"v_lshlrev_b32 v{B+2*i}, 16, v{T+i}", f"v_and_b32 v{B+2*i+1}, 0xffff0000, v{T+i}")
    for ks in range(20):
        for t in range(2):
            d = CS + 4 * t
            a(f"v_mfma_f32_16x16x32_bf16 v[{d}:{d+3}], a[{8*ks+4*t}:{8*ks+4*t+3}], v[{ONES}:{ONES+3}], " + ("0" if ks == 0 else f"v[{d}:{d+3}]"))
    def fetch(seg):
        a(f"s_mul_i32 s30, {seg}, 40960", "s_mul_i32 s31, s16, 10240", "s_add_u32 s30, s30, s31", f"s_add_u32 s30, s30, {HB}")
        dma(a, 10, "s30", "s26")
    lg = Cnt(a, "lgkmcnt", 15)
    setneed(a)
    a.lab("PC_seg")
    setflag(a, "s47", 8)
    a("s_mov_b32 s47, 0x7ffffff0")
    a.lab("PC_redo")
    a("s_lshl_b32 s30, s19, 13", f"s_add_u32 s30, s30, {HFL}")
    waitflags(a, "s30", FA, 8, "s58")
    st(0)
    fetch("s19")
    a("s_waitcnt vmcnt(0)")
    a.lab("PC_have")
    a("s_waitcnt vmcnt(3)", "s_barrier")
    st(2)
    def rd(ks):
        return [(f"ds_read_b128 v[{XF+8*(ks%4)+4*m}:{XF+8*(ks%4)+4*m+3}], v{XA+ks//5} offset:{(m*20+ks%5)*1024}", ks) for m in range(2)]
    for x in rd(0) + rd(1) + rd(2): a(x[0]); lg.issue(x[1])
    a("s_add_u32 s34, s19, s18", "s_min_u32 s30, s34, 63", "s_lshl_b32 s30, s30, 13", f"s_add_u32 s46, s30, {HFL}")
    sc = Sched(a, lg)
    for ks in range(20):
        n0 = len(sc.mm)
        for m in range(2):
            x = XF + 8 * (ks % 4) + 4 * m
            for t in range(2):
                d = D + 8 * m + 4 * t
                sc.add(f"v_mfma_f32_16x16x32_bf16 v[{d}:{d+3}], a[{8*ks+4*t}:{8*ks+4*t+3}], v[{x}:{x+3}], " + ("0" if ks == 0 else f"v[{d}:{d+3}]"), [ks])
            if ks < 5:
                for t, A in enumerate((ONES, x)):
                    d = G + 8 * m + 4 * t
                    sc.add(f"v_mfma_f32_16x16x32_bf16 v[{d}:{d+3}], v[{A}:{A+3}], v[{x}:{x+3}], " + ("0" if ks == 0 else f"v[{d}:{d+3}]"), [ks])
        if ks + 3 < 20:
            for k, x in enumerate(rd(ks + 3)): sc.fill(n0 + k, *x)
    n = 48
    for m in range(2):
        g = G + 8 * m + 4
        for x in (f"v_cndmask_b32 v{g}, v{g}, v{g+1}, s[64:65]", f"v_cndmask_b32 v{g+2}, v{g+2}, v{g+3}, s[64:65]",
                  f"v_cndmask_b32 v{S1+2*m+1}, v{g}, v{g+2}, s[66:67]", f"v_mov_b32 v{S1+2*m}, v{G+8*m}"):
            sc.fill(n, x); n += 1
    sc.fill(58, "s_mov_b64 exec, s[68:69]"); sc.fill(58, f"ds_write_b128 v{SA}, v[{S1}:{S1+3}]", 'sw'); sc.fill(58, "s_mov_b64 exec, -1")
    sc.fill(66, "s_barrier", None, ['sw'])
    for w in range(4): sc.fill(66 + 4 * (w // 2) + w % 2, f"ds_read_b128 v[{O+4*w}:{O+4*w+3}], v{SR} offset:{256*w}", 'sr')
    sc.fill(30, "s_waitcnt vmcnt(0)"); sc.fill(31, "s_mov_b64 exec, 1"); sc.fill(31, f"buffer_store_dword v{ONES}, v2, {WS}, s47 offen sc1"); sc.fill(31, "s_mov_b64 exec, -1")
    sc.fill(62, f"buffer_load_dword v{FV}, v{FA}, {WS}, s46 offen sc1")
    stat = []
    for i in range(4):
        stat += [f"v_add_f32 v{O+i}, v{O+i}, v{O+4+i}", f"v_add_f32 v{O+8+i}, v{O+8+i}, v{O+12+i}", f"v_add_f32 v{S1+i}, v{O+i}, v{O+8+i}", f"v_mul_f32 v{S1+i}, 0x3acccccd, v{S1+i}"]
    rb = lambda v: [f"v_cvt_pk_bf16_f32 v{v}, v{v}, v{v}", f"v_and_b32 v{v}, 0xffff0000, v{v}"]
    per = []
    for m in range(2):
        mu, va = S1 + 2 * m, S1 + 2 * m + 1
        per.append([f"v_fma_f32 v{va}, -v{mu}, v{mu}, v{va}", f"v_max_f32 v{va}, 0, v{va}"] + rb(mu) + rb(va) + [f"v_add_f32 v{va}, 0x3727c5ac, v{va}"] + rb(va) +
                   [f"v_sqrt_f32 v{va}, v{va}"] + rb(va) + [f"v_rcp_f32 v{va}, v{va}", f"v_mul_f32 v{mu}, v{mu}, v{va}"])
    for x, y in zip(*per): stat += [x, y]
    for k, x in enumerate(stat): sc.fill(78 + k // 2, x, None, ['sr'] if k == 0 else ())
    sc.emit()
    st(3)
    a("s_lshl_b32 s30, s19, 13", "s_lshl_b32 s31, s17, 7", "s_add_u32 s30, s30, s31", f"s_add_u32 s57, s30, {AFL}")
    for q in range(4): a(f"v_xor_b32 v{XA+q}, 0x10000, v{XA+q}")
    a("s_xor_b32 s26, s26, 0x10000", "s_mov_b32 s47, 0x7ffffff0")
    a(f"v_cmp_u_f32 vcc, v{S1}, v{S1+2}", "s_cbranch_vccz PC_ok")
    a("s_cmp_eq_u32 s58, 2", "s_mov_b32 s58, 2", "s_cbranch_scc0 PC_redo")
    a.lab("PC_ok")
    a("s_mov_b32 s27, 0", "s_waitcnt vmcnt(0)", f"v_cmp_gt_u32 vcc, 2, v{FV}")
    a("s_cbranch_vccnz PC_nopf", "s_cmp_ge_u32 s34, s59", "s_cbranch_scc1 PC_nopf")
    fetch("s34")
    a("s_mov_b32 s27, 1")
    a.lab("PC_nopf")
    a("s_mul_i32 s30, s19, 98304", "s_lshl_b32 s31, s17, 10", "s_add_u32 s30, s30, s31", f"s_add_u32 s30, s30, {ACT}", "s_add_u32 s31, s30, 49152")
    for m in range(2):
        mu, rs = S1 + 2 * m, S1 + 2 * m + 1
        R = [D + 8 * m + i for i in range(8)]
        N = O; P = O + 8; Dn = O + 16
        for i in range(8): a(f"v_fma_f32 v{N+i}, -v{mu}, v{CS+i}, v{B+i}")
        for i, r in enumerate(R): a(f"v_fma_f32 v{r}, v{r}, v{rs}, v{N+i}")
        for i, r in enumerate(R): a(f"v_mul_f32 v{N+i}, s39, v{r}")
        for i in range(8): a(f"v_min_f32 v{N+i}, s38, v{N+i}")
        for i in range(8): a(f"v_exp_f32 v{N+i}, v{N+i}")
        for i in range(8): a(f"v_add_f32 v{P+i}, 2.0, v{N+i}")
        for i in range(8): a(f"v_fma_f32 v{Dn+i}, v{N+i}, v{P+i}, 2.0")
        if m == 1 and OPT.get('lc', 1) == 1: earlyflag(a, "s57", 8)
        for i in range(8): a(f"v_rcp_f32 v{Dn+i}, v{Dn+i}")
        for i in range(8): a(f"v_mul_f32 v{N+i}, v{N+i}, v{P+i}")
        for i in range(8): a(f"v_mul_f32 v{N+i}, v{N+i}, v{Dn+i}")
        for i, r in enumerate(R): a(f"v_mul_f32 v{r}, v{r}, v{N+i}")
        o = T + 4 * m
        for i in range(4): a(f"v_cvt_pk_bf16_f32 v{o+i}, v{R[2*i]}, v{R[2*i+1]}")
        a(f"buffer_store_dwordx4 v[{o}:{o+3}], v2, {WS}, s{30+m} offen sc1")
    st(4)
    if OPT.get('lc', 1) == 0: earlyflag(a, "s57", 8)
    a("s_mov_b32 s47, s57")
    st(1); st.dump(180, second=True)
    a("s_mov_b32 s19, s34")
    setneed(a)
    st(0)
    a("s_cmp_lg_u32 s27, 0", "s_cbranch_scc1 PC_have")
    a("s_cmp_lt_u32 s19, s59", "s_cbranch_scc1 PC_seg")
    setflag(a, "s47", 8)
    a("s_endpgm")

def role_d(a, st):
    a.lab("P_d")
    a("v_max_u32 v4, 40, v1", "v_lshlrev_b32 v4, 7, v4", f"s_mov_b32 s30, {WTF}")
    waitflags(a, "s30", 4, 8)
    a(f"s_load_dwordx2 s[40:41], s[0:1], {A_OUT}", "s_waitcnt lgkmcnt(0)")
    srd(a, 8, 40, 2048 * 1280)
    XF = 64; D = 32; T = 16; R = 24; O = 28; LW_ = 10; LR_ = 11; FA = 9
    ksum_setup(a, LW_, LR_)
    row_off(a, 6, 7); half_frag_off(a, 7, 8)
    a("s_lshl_b32 s42, s17, 2", "s_mul_i32 s30, s42, 49152", "s_mul_i32 s43, s16, 12288", "s_add_u32 s30, s30, s43", f"s_add_u32 s30, s30, {W2F}")
    for t in range(4):
        for i in range(12):
            r = 48 * t + 4 * i
            a(f"buffer_load_dwordx4 a[{r}:{r+3}], v2, {WS}, s30 offen offset:{(i%4)*1024} sc1")
            if i % 4 == 3: a("s_add_u32 s30, s30, 4096")
        a(f"s_add_u32 s30, s30, {49152-12288}")
    a("s_add_u32 s42, s42, s16")
    a(f"v_min_u32 v{FA}, 11, v1", f"v_lshlrev_b32 v{FA}, 7, v{FA}", "s_mul_i32 s44, s16, 1536", f"s_add_u32 s44, s44, {AFL}")
    FV = 12
    def addr(seg):
        a(f"s_mul_i32 s60, {seg}, 98304", "s_add_u32 s60, s60, s43", f"s_add_u32 s60, s60, {ACT}")
    def spread():
        a("s_add_u32 s61, s60, 4096", "s_add_u32 s62, s60, 8192", "s_add_u32 s63, s60, 49152", "s_add_u32 s64, s60, 53248", "s_add_u32 s65, s60, 57344")
    def ld(i):
        return [f"buffer_load_dwordx4 v[{XF+8*i+4*m}:{XF+8*i+4*m+3}], v2, {WS}, s{60+3*m+i//4} offen offset:{(i%4)*1024} sc1" for m in range(2)]
    def ldf(seg):
        a(f"s_min_u32 s30, {seg}, 63", "s_lshl_b32 s30, s30, 13", "s_add_u32 s30, s30, s44", f"buffer_load_dword v{FV}, v{FA}, {WS}, s30 offen sc1")
    setneed(a)
    a.lab("PD_seg")
    addr("s19"); spread()
    a("s_add_u32 s34, s19, s18"); ldf("s34")
    a("s_lshl_b32 s30, s19, 13", "s_add_u32 s30, s30, s44")
    waitflags(a, "s30", FA, 8, "s58")
    st(0)
    for i in range(12): a(*ld(i))
    a.lab("PD_have")
    a("s_mul_i32 s32, s19, 40960", "s_lshl_b32 s31, s42, 9", "s_add_u32 s30, s32, s31", f"s_add_u32 s30, s30, {HB}", "s_add_u32 s31, s30, 20480")
    for m in range(2): a(f"buffer_load_dwordx2 v[{R+2*m}:{R+2*m+1}], v7, {WS}, s{30+m} offen sc1")
    a("s_add_u32 s34, s19, s18", f"v_cmp_gt_u32 vcc, 2, v{FV}")
    addr("s34")
    a("s_cmp_lt_u32 s34, s59", "s_cselect_b32 s27, 1, 0", "s_cmp_eq_u64 vcc, 0", "s_cselect_b32 s27, s27, 0")
    a("s_cmp_lg_u32 s27, 0", "s_cselect_b32 s60, s60, 0x7ff00000")
    spread()
    a("s_add_u32 s33, s34, s18"); ldf("s33")
    for i in range(12):
        a("s_waitcnt vmcnt(25)")
        for t in range(4):
            for m in range(2):
                d = D + 8 * t + 4 * m; w = 48 * t + 4 * i; x = XF + 8 * i + 4 * m
                a(f"v_mfma_f32_16x16x32_bf16 v[{d}:{d+3}], a[{w}:{w+3}], v[{x}:{x+3}], " + ("0" if i == 0 else f"v[{d}:{d+3}]"))
        a(*ld(i))
    st(2); st(3); st(4)
    a(f"v_cmp_u_f32 vcc, v{D}, v{D+4}", "s_cbranch_vccz PD_ok")
    a("s_cmp_eq_u32 s58, 2", "s_mov_b32 s58, 2", "s_cbranch_scc0 PD_seg")
    a.lab("PD_ok")
    ksum(a, D, 4, LW_, LR_, T)
    a("s_lshl_b32 s31, s42, 5", "s_add_u32 s30, s32, s31", "s_add_u32 s31, s30, 20480", "s_waitcnt vmcnt(24)")
    for m in range(2):
        resid(a, T + 4 * m, R + 2 * m, O + 2 * m)
        a(f"buffer_store_dwordx2 v[{O+2*m}:{O+2*m+1}], v6, s[8:11], s{30+m} offen")
    a(f"v_xor_b32 v{LW_}, 0x8000, v{LW_}", f"v_xor_b32 v{LR_}, 0x8000, v{LR_}")
    st(1); st.dump(180, second=True)
    a("s_mov_b32 s19, s34")
    setneed(a)
    st(0)
    a("s_cmp_lg_u32 s27, 0", "s_cbranch_scc1 PD_have")
    a("s_cmp_lt_u32 s19, s59", "s_cbranch_scc1 PD_seg")
    dbgt(a, 9, 4)
    a("s_endpgm")
```
